```python
import torch

def _softmax(x, axis=-1):
    return torch.softmax(x, dim=axis)
def _gelu(x):
    return torch.nn.functional.gelu(x, approximate="tanh")
def _silu(x):
    return torch.nn.functional.silu(x)
def _sigmoid(x):
    return torch.sigmoid(x)
def _layernorm(x, axis=-1, eps=1e-5):
    m = x.mean(dim=axis, keepdim=True)
    v = x.var(dim=axis, keepdim=True, unbiased=False)
    return (x - m) / torch.sqrt(v + eps)
def _scatter_add(tgt, idx, src, axis=0):
    return tgt.clone().index_add_(axis, idx, src)
def _segment_sum(src, seg, n):
    out = torch.zeros((n,) + src.shape[1:], dtype=src.dtype)
    return out.index_add_(0, seg, src)
def _pad(x, pw):
    flat = tuple(v for pair in reversed(pw) for v in pair)
    return torch.nn.functional.pad(x, flat)

kernel_name = 'sequential_preLN__sliding_block__mixer_channel_mlp__prompt'

def setup_inputs():

    _w = (lambda a: (lambda t: t.to(torch.bfloat16) if t.is_floating_point() else t)(torch.as_tensor(a)))
    def _A_setup():
        B, S, D = 1, 2048, 512
        return {
            "x": _w((lambda *s: torch.randn(*s, dtype=torch.bfloat16) * 0.05)(B, S, D)),
            "wqkv": _w((lambda *s: torch.randn(*s, dtype=torch.bfloat16) * 0.05)(D, 3 * D)),
            "wo": _w((lambda *s: torch.randn(*s, dtype=torch.bfloat16) * 0.05)(D, D)),
        }
    _A_in = _A_setup()

    def _B_setup():
        B, S, D, F = 1, 2048, 512, 1792
        return {
            "x": _w((lambda *s: torch.randn(*s, dtype=torch.bfloat16) * 0.05)(B, S, D)),
            "w1": _w((lambda *s: torch.randn(*s, dtype=torch.bfloat16) * 3.2)(D, F) * (D ** -0.5)),
            "b1": _w((lambda *s: torch.randn(*s, dtype=torch.bfloat16) * 1.6)(F)),
            "w2": _w((lambda *s: torch.randn(*s, dtype=torch.bfloat16) * 0.2)(F, D) * (F ** -0.5)),
            "b2": _w((lambda *s: torch.randn(*s, dtype=torch.bfloat16) * 0.2)(D)),
        }
    _B_in = _B_setup()

    return {
        "A_x": _A_in["x"],
        "A_wqkv": _A_in["wqkv"],
        "A_wo": _A_in["wo"],
        "B_x": _B_in["x"],
        "B_w1": _B_in["w1"],
        "B_b1": _B_in["b1"],
        "B_w2": _B_in["w2"],
        "B_b2": _B_in["b2"],
    }

def reference(A_x, A_wqkv, A_wo, B_x, B_w1, B_b1, B_w2, B_b2):
    def _A_ref(x, wqkv, wo):
        B, S, D = x.shape
        H = 32; Dh = D // H; W = 256
        qkv = (lambda x, *d: x.permute(*d))((x @ wqkv).reshape(B, S, 3, H, Dh), 2, 0, 3, 1, 4)
        q, k, v = qkv[0], qkv[1], qkv[2]
        scores = torch.einsum("bhqd,bhkd->bhqk", q, k) * (Dh ** -0.5)
        idx = torch.arange(S)
        mask = (idx[:, None] - idx[None, :] >= 0) & (idx[:, None] - idx[None, :] < W)
        scores = torch.where(mask[None, None], scores, -1e9)
        p = _softmax(scores, axis=-1)
        o = torch.einsum("bhqk,bhkd->bhqd", p, v)
        return (lambda x, *d: x.permute(*d))(o, 0, 2, 1, 3).reshape(B, S, D) @ wo

    def _B_ref(x, w1, b1, w2, b2):
        y = _layernorm(x, axis=-1)
        h = _gelu(torch.einsum("bsd,df->bsf", y, w1) + b1)
        return torch.einsum("bsf,fd->bsd", h, w2) + b2

    x = A_x
    h = x + _A_ref(_layernorm(x, axis=-1), A_wqkv, A_wo)
    h2 = h + _B_ref(_layernorm(h, axis=-1), B_w1, B_b1, B_w2, B_b2)
    return h2
```

```python
import re
import copy

TRANS = ("v_exp_f32", "v_log_f32", "v_rcp_f32", "v_rsq_f32", "v_sqrt_f32", "v_sin_f32", "v_cos_f32")
SCC_W = ("s_add_", "s_sub_", "s_addc_", "s_subb_", "s_and_", "s_or_", "s_xor_", "s_andn2_", "s_orn2_", "s_lshl_", "s_lshr_",
         "s_ashr_", "s_min_", "s_max_", "s_cmp", "s_bfe_", "s_not_", "s_addk_", "s_bitcmp", "s_lshl1", "s_lshl2", "s_lshl3", "s_lshl4")


def split_ops(s):
    ops, depth, cur = [], 0, ""
    for ch in s:
        if ch in "[(":
            depth += 1
        elif ch in "])":
            depth -= 1
        if ch == "," and depth == 0:
            ops.append(cur.strip())
            cur = ""
        else:
            cur += ch
    if cur.strip():
        ops.append(cur.strip())
    mods = []
    if ops:
        last = ops[-1]
        parts, depth, cur = [], 0, ""
        for ch in last:
            if ch in "[(":
                depth += 1
            elif ch in "])":
                depth -= 1
            if ch == " " and depth == 0:
                if cur:
                    parts.append(cur)
                cur = ""
            else:
                cur += ch
        if cur:
            parts.append(cur)
        ops[-1] = parts[0]
        mods = parts[1:]
    return ops, mods


_REG = re.compile(r"^([vas])(?:(\d+)|\[(\d+):(\d+)\])$")


def regs_of(tok):
    t = tok.strip().lstrip("-").strip("|")
    if t.startswith("abs(") and t.endswith(")"):
        t = t[4:-1]
    if t == "vcc":
        return {"vcc"}
    if t in ("exec", "exec_lo", "exec_hi"):
        return {"exec"}
    if t == "m0":
        return {"m0"}
    m = _REG.match(t)
    if not m:
        return set()
    f = m.group(1)
    if m.group(2) is not None:
        return {f + m.group(2)}
    return {f + str(i) for i in range(int(m.group(3)), int(m.group(4)) + 1)}


class Inst:
    __slots__ = ("text", "mn", "ops", "mods", "R", "W", "kind", "tag", "opA", "opB", "opC", "target", "comment", "auto")

    def __init__(self, text, tag=None):
        self.text = text.strip()
        self.tag = tag
        self.target = None
        self.auto = False
        self.opA = self.opB = self.opC = set()
        t = self.text
        if t.endswith(":"):
            self.mn, self.ops, self.mods, self.kind = "label", [], [], "label"
            self.R, self.W = set(), set()
            self.target = t[:-1]
            return
        if t.startswith(".") or t.startswith(";"):
            self.mn, self.ops, self.mods, self.kind = "dir", [], [], "dir"
            self.R, self.W = set(), set()
            return
        sp = t.split(None, 1)
        mn = sp[0]
        self.mn = mn
        ops, mods = split_ops(sp[1]) if len(sp) > 1 else ([], [])
        self.ops, self.mods = ops, mods
        rs = [regs_of(o) for o in ops]
        U = lambda l: set().union(*l) if l else set()
        R, W = set(), set()
        if mn.startswith("v_mfma"):
            kind = "mfma"
            W = rs[0]
            self.opA, self.opB, self.opC = rs[1], rs[2], rs[3]
            R = U(rs[1:])
        elif mn.startswith("v_"):
            kind = "valu"
            if mn.startswith("v_permlane") and "swap" in mn:
                R = W = U(rs)
            elif mn.startswith(("v_fmac", "v_dot2c", "v_pk_fmac", "v_writelane")):
                W = rs[0]
                R = U(rs)
            elif mn.endswith("_dpp") or any(m.startswith(("row_", "quad_perm")) for m in mods):
                W = rs[0]
                R = U(rs)
            elif mn.startswith("v_cmpx"):
                W = rs[0] | {"exec"}
                R = U(rs[1:])
            else:
                W = rs[0]
                R = U(rs[1:])
                if mn.startswith("v_cndmask") and len(ops) == 3:
                    R |= {"vcc"}
        elif mn.startswith("s_"):
            kind = "salu"
            if mn in ("s_waitcnt", "s_nop", "s_barrier", "s_sleep", "s_setprio", "s_endpgm"):
                kind = {"s_waitcnt": "wait", "s_nop": "nop", "s_barrier": "barrier", "s_endpgm": "end"}.get(mn, "salu")
            elif mn == "s_branch":
                kind = "branch"
                self.target = ops[0]
            elif mn.startswith("s_cbranch"):
                kind = "cbranch"
                self.target = ops[0]
                R = {"scc"} if "scc" in mn else ({"vcc"} if "vcc" in mn else {"exec"})
            elif mn.startswith("s_cmp") or mn.startswith("s_bitcmp"):
                R = U(rs)
                W = {"scc"}
            elif mn.startswith("s_load") or mn.startswith("s_memtime") or mn.startswith("s_memrealtime"):
                kind = "smem"
                W = rs[0]
                R = U(rs[1:])
            elif "saveexec" in mn:
                W = rs[0] | {"exec", "scc"}
                R = U(rs[1:]) | {"exec"}
            elif mn == "s_setpc_b64":
                kind = "setpc"
                R = rs[0]
            else:
                W = rs[0]
                R = U(rs[1:])
                if mn.startswith(("s_cselect", "s_addc", "s_subb", "s_cmov")):
                    R |= {"scc"}
                if mn.startswith(("s_addk", "s_mulk", "s_cmov", "s_bitset")):
                    R |= rs[0]
                if mn.startswith(SCC_W):
                    W = W | {"scc"}
        elif mn.startswith("buffer_load") or mn.startswith("global_load"):
            if "lds" in mods:
                kind = "dma"
                R = U(rs) | {"m0"}
            else:
                kind = "vload"
                W = rs[0]
                R = U(rs[1:])
        elif mn.startswith("buffer_store") or mn.startswith("global_store"):
            kind = "vstore"
            R = U(rs)
        elif mn.startswith("buffer_atomic"):
            kind = "vstore"
            R = U(rs)
            if "sc0" in mods:
                kind = "vload"
                W = rs[0]
        elif mn.startswith("ds_read"):
            kind = "dsread"
            W = rs[0]
            R = U(rs[1:])
        elif mn.startswith("ds_write"):
            kind = "dswrite"
            R = U(rs)
        else:
            raise ValueError("unknown instruction: " + t)
        self.kind, self.R, self.W = kind, R, W

    def is_vmem(self):
        return self.kind in ("vload", "vstore", "dma")

    def is_ds(self):
        return self.kind in ("dsread", "dswrite")


def I(text, tag=None):
    return Inst(text, tag)


class Wait:
    kind = "pwait"

    def __init__(self, *tags, vm=True, lgkm=True):
        self.tags = set(tags)
        self.vm, self.lgkm = vm, lgkm


class TrackState:
    def __init__(self):
        self.vm = []
        self.lg = []
        self.seq = 0

    def clone(self):
        return copy.deepcopy(self)


class Prog:
    def __init__(self):
        self.out = []
        self.st = TrackState()
        self.log = []

    def _emit_wait(self, vm_n, lg_n, why):
        parts = []
        st = self.st
        if vm_n is not None:
            n = min(vm_n, 63)
            parts.append("vmcnt(%d)" % n)
            st.vm = st.vm[len(st.vm) - n:] if n < len(st.vm) else st.vm
            if n == 0:
                st.vm = []
        if lg_n is not None:
            if any(e[3] for e in st.lg):
                lg_n = 0
            n = min(lg_n, 15)
            parts.append("lgkmcnt(%d)" % n)
            st.lg = st.lg[len(st.lg) - n:] if n < len(st.lg) else st.lg
            if n == 0:
                st.lg = []
        if parts:
            w = Inst("s_waitcnt " + " ".join(parts))
            w.auto = True
            self.out.append(w)
            self.log.append((len(self.out), w.text, why))

    def _need(self, q, pred):
        idx = -1
        for i, e in enumerate(q):
            if pred(e):
                idx = i
        return None if idx < 0 else len(q) - 1 - idx

    def emit(self, x):
        if isinstance(x, (list, tuple)):
            for y in x:
                self.emit(y)
            return
        if isinstance(x, str):
            for line in x.split("\n"):
                line = line.split(";")[0].strip() if not line.strip().startswith(";") else ""
                if line:
                    self.emit(Inst(line))
            return
        st = self.st
        if isinstance(x, Wait):
            vm_n = self._need(st.vm, lambda e: e[2] in x.tags) if x.vm else None
            lg_n = self._need(st.lg, lambda e: e[2] in x.tags) if x.lgkm else None
            self._emit_wait(vm_n, lg_n, "tags %s" % sorted(x.tags))
            return
        if callable(x):
            x(self)
            return
        ins = x
        touched = ins.R | ins.W
        vm_n = self._need(st.vm, lambda e: e[1] & (ins.R if ins.kind == "vload" else touched))
        lg_n = self._need(st.lg, lambda e: e[1] & (ins.R if ins.kind == "dsread" and not e[3] else touched))
        self._emit_wait(vm_n, lg_n, ins.text)
        if ins.kind == "wait":
            m = re.search(r"vmcnt\((\d+)\)", ins.text)
            if m:
                n = int(m.group(1))
                st.vm = st.vm[len(st.vm) - n:] if 0 < n < len(st.vm) else ([] if n == 0 else st.vm)
            m = re.search(r"lgkmcnt\((\d+)\)", ins.text)
            if m:
                n = int(m.group(1))
                assert n == 0 or not any(e[3] for e in st.lg)
                st.lg = st.lg[len(st.lg) - n:] if 0 < n < len(st.lg) else ([] if n == 0 else st.lg)
        self.out.append(ins)
        st.seq += 1
        if ins.is_vmem():
            st.vm.append((st.seq, set(ins.W), ins.tag))
        elif ins.is_ds():
            st.lg.append((st.seq, set(ins.W), ins.tag, False))
        elif ins.kind == "smem":
            st.lg.append((st.seq, set(ins.W), ins.tag, True))

    def __call__(self, *xs):
        for x in xs:
            self.emit(x)

    def drain(self, vm=True, lgkm=True):
        self._emit_wait(0 if vm and self.st.vm else None, 0 if lgkm and self.st.lg else None, "drain")

    def snapshot(self):
        return self.st.clone()

    def restore(self, s):
        self.st = s.clone()

    @staticmethod
    def merge(states):
        best = TrackState()
        for q in ("vm", "lg"):
            longest = max((getattr(s, q) for s in states), key=len)
            for s in states:
                o = getattr(s, q)
                tail = longest[len(longest) - len(o):] if o else []
                assert [e[2] for e in tail] == [e[2] for e in o] and [e[1] for e in tail] == [e[1] for e in o], \
                    "merge mismatch %s: %s vs %s" % (q, [e[2] for e in longest], [e[2] for e in o])
            setattr(best, q, copy.deepcopy(longest))
        best.seq = max(s.seq for s in states)
        return best

    def fix_hazards(self):
        total = 0
        while True:
            n = self._hazard_pass()
            total += n
            if n == 0:
                break
        return total

    def _preds(self):
        out = self.out
        labels = {x.target: i for i, x in enumerate(out) if x.kind == "label"}
        preds = [[] for _ in out]
        for i, x in enumerate(out):
            if x.kind in ("branch", "cbranch"):
                preds[labels[x.target]].append(i)
            if x.kind == "setpc":
                for t in x.tag:
                    preds[labels[t]].append(i)
            if x.kind not in ("branch", "end", "setpc") and i + 1 < len(out):
                preds[i + 1].append(i)
        return preds

    @staticmethod
    def states(x):
        if x.kind in ("label", "dir"):
            return 0
        if x.kind == "nop":
            return int(x.ops[0]) + 1
        return 1

    @staticmethod
    def passes(x):
        return 8 if "32x32" in x.mn else 4

    @staticmethod
    def required(p, c):
        need = 0
        ck, pk = c.kind, p.kind
        vregs = lambda s: {r for r in s if r[0] in "va" and r != "vcc"}
        sregs = lambda s: {r for r in s if r[0] == "s" and r != "scc" or r == "vcc"}
        if pk == "valu":
            pv = vregs(p.W)
            ps = sregs(p.W)
            if pv:
                if ck == "mfma" and pv & c.R:
                    need = max(need, 2)
                if ck == "valu":
                    if c.mn.startswith(("v_readlane", "v_readfirstlane")) and pv & c.R:
                        need = max(need, 1)
                    if (c.mn.endswith("_dpp") or any(m.startswith(("row_", "quad_perm")) for m in c.mods)) and pv & c.R:
                        need = max(need, 2)
                    if c.mn.startswith("v_permlane") and pv & c.R:
                        need = max(need, 2)
                    if p.mn.startswith(TRANS) and not c.mn.startswith(TRANS) and pv & c.R:
                        need = max(need, 1)
                if p.mn.startswith("v_dot2"):
                    if pv & (c.R | c.W):
                        if c.mn == p.mn:
                            srcAB = regs_of(c.ops[1]) | regs_of(c.ops[2])
                            if pv & srcAB:
                                need = max(need, 3)
                        else:
                            need = max(need, 3)
            if ps:
                if c.is_vmem() and ps & c.R:
                    need = max(need, 5)
                if ck == "valu" and ps & c.R:
                    need = max(need, 4 if c.mn.startswith(("v_readlane", "v_writelane")) else 2)
                if ck == "mfma" and ps & c.R:
                    need = max(need, 2)
                if ck in ("salu", "cbranch") and ps & c.R:
                    need = max(need, 1)
            if "exec" in p.W:
                need = max(need, 5)
        elif pk == "mfma":
            n = Prog.passes(p)
            D = p.W
            big = {4: 8, 8: 12}[n]
            if ck == "mfma":
                if D & (c.opA | c.opB):
                    need = max(need, big)
                if D & c.opC:
                    if c.opC == D and Prog.passes(c) == n:
                        pass
                    else:
                        need = max(need, {4: 6, 8: 10}[n])
                if D & c.W and not (c.opC == D and c.W == D):
                    need = max(need, big)
            elif ck in ("valu", "vload", "vstore", "dma", "dsread", "dswrite"):
                if D & (c.R | c.W):
                    need = max(need, big)
                if ck == "valu" and p.opC & c.W:
                    need = max(need, {4: 3, 8: 7}[n])
        elif pk == "salu":
            if "m0" in p.W and ck == "dma":
                need = max(need, 1)
        elif pk == "vstore":
            if p.mn.endswith(("x3", "x4")):
                data = regs_of(p.ops[0]) if p.mn.startswith("buffer") else regs_of(p.ops[1])
                if data & c.W:
                    need = max(need, 2)
        elif pk == "dswrite":
            if p.mn.endswith(("b96", "b128")):
                if regs_of(p.ops[1]) & c.W:
                    need = max(need, 2)
        return need

    def _hazard_pass(self):
        preds = self._preds()
        out = self.out
        inserts = {}
        MAXD = 14
        for i, c in enumerate(out):
            if c.kind in ("label", "dir", "nop", "wait", "barrier", "end", "branch"):
                continue
            worst = 0
            stack = [(j, 0) for j in preds[i]]
            seen = {}
            while stack:
                j, d = stack.pop()
                if seen.get(j, 99) <= d:
                    continue
                seen[j] = d
                p = out[j]
                if p.kind not in ("label", "dir", "nop"):
                    r = Prog.required(p, c)
                    if r > d:
                        worst = max(worst, r - d)
                d2 = d + Prog.states(p)
                if d2 < MAXD:
                    for k in preds[j]:
                        stack.append((k, d2))
            if worst:
                inserts[i] = worst
                break
        if not inserts:
            return 0
        for i in sorted(inserts, reverse=True):
            n = inserts[i]
            nop = Inst("s_nop %d" % (n - 1))
            nop.auto = True
            out.insert(i, nop)
        return len(inserts)

    def fix_hazards_fast(self):
        out = self.out
        i = 0
        count = 0
        MAXD = 14
        preds = None
        res = []
        for c in out:
            if c.kind not in ("label", "dir", "nop", "wait", "barrier", "end", "branch"):
                d = 0
                worst = 0
                for p in reversed(res):
                    if p.kind in ("branch", "end", "setpc"):
                        break
                    if p.kind not in ("label", "dir", "nop"):
                        r = Prog.required(p, c)
                        if r > d:
                            worst = max(worst, r - d)
                    d += Prog.states(p)
                    if d >= MAXD:
                        break
                if worst:
                    nop = Inst("s_nop %d" % (worst - 1))
                    nop.auto = True
                    res.append(nop)
                    count += 1
            res.append(c)
        self.out = res
        return count + self.fix_hazards()

    def check_exec(self):
        narrowed = False
        for x in self.out:
            if "exec" in x.W:
                narrowed = not (x.text.replace(" ", "") == "s_mov_b64exec,-1")
            elif x.kind in ("label", "branch", "cbranch"):
                assert not narrowed, "control flow with narrowed exec near " + x.text
            elif narrowed and (x.kind in ("mfma", "barrier", "valu") or x.mn.startswith("ds_read")):
                raise AssertionError("instruction under narrowed exec: " + x.text)

    def text(self):
        lines = []
        for x in self.out:
            if x.kind == "label":
                lines.append(x.text)
            else:
                lines.append("    " + x.text + ("   ; auto" if x.auto else ""))
        return "\n".join(lines)

    def stats(self, a=0, b=None):
        from collections import Counter
        c = Counter()
        for x in self.out[a:b]:
            c[x.kind] += 1
            if x.kind == "nop" and x.auto:
                c["auto_nop_states"] += int(x.ops[0]) + 1
        return dict(c)


def cost(x):
    if isinstance(x, Inst):
        if x.kind == "mfma":
            return 2
        if x.mn.startswith(TRANS) or x.mn.startswith("v_permlane"):
            return 2
        if x.kind in ("label", "dir"):
            return 0
        return 1
    if isinstance(x, (list, tuple)):
        return sum(cost(y) for y in x)
    return 0


def weave(main, filler, per=None):
    total = sum(cost(f) for f in filler)
    n = len(main)
    out = []
    k = 0
    acc = 0
    for i, g in enumerate(main):
        out.extend(g if isinstance(g, list) else [g])
        target = total * (i + 1) / n if per is None else per * (i + 1)
        while k < len(filler) and (acc + cost(filler[k]) / 2 <= target):
            out.append(filler[k])
            acc += cost(filler[k])
            k += 1
    out.extend(filler[k:])
    return out


class Regs:
    def __init__(self, f, lo, hi):
        self.f, self.lo, self.hi = f, lo, hi
        self.used = {}
        self.hiwater = lo

    def alloc(self, name, n=1, align=1, at=None):
        assert name not in self.used, name
        taken = set()
        for (b, m) in self.used.values():
            taken.update(range(b, b + m))
        if at is not None:
            assert not (taken & set(range(at, at + n))), (name, at, n, self.used)
            b = at
        else:
            b = self.lo
            while True:
                if b % align == 0 and not (taken & set(range(b, b + n))):
                    break
                b += 1
            assert b + n <= self.hi, "out of %s registers for %s (%d): %s" % (self.f, name, n, self.used)
        self.used[name] = (b, n)
        self.hiwater = max(self.hiwater, b + n)
        return R(self.f, b, n)

    def free(self, *names):
        for nme in names:
            del self.used[nme]


class R:
    def __init__(self, f, b, n):
        self.f, self.b, self.n = f, b, n

    def __getitem__(self, i):
        assert 0 <= i < self.n, (i, self.n)
        return "%s%d" % (self.f, self.b + i)

    def t(self, i=0, n=None):
        if n is None:
            n = self.n - i
        assert 0 <= i and i + n <= self.n, (i, n, self.n)
        if n == 1:
            return self[i]
        return "%s[%d:%d]" % (self.f, self.b + i, self.b + i + n - 1)

    def sub(self, i, n):
        assert 0 <= i and i + n <= self.n
        return R(self.f, self.b + i, n)

    def __str__(self):
        return self.t()
```

```python
import sys
import os
sys.path.insert(0, os.path.dirname(os.path.abspath(__file__)))
from asmgen import *

NAME = "sequential_preLN__sliding_block__mixer_channel_mlp__prompt"

class O:
    stop = None
    stamps = False
    mimic_ln1 = True
    kv_flag_step = 18
    kv_poll_step = 28
    oa_flag_tile = 5
    oa_poll_tile = 8
    prefetch_code = True
    timeout = 1 << 16

WS_EPOCH = 0
F_KV = 0x1000
F_O = 0x2000
F_H = 0x4000
F_G = 0x6000
HSTAT = 0x10000
KBUF = 0x100000
VBUF = 0x300000
OBUF = 0x500000
HBUF = 0x700000
GBUF = 0x900000
WS_END = 0x1000000
STAMPS = 0x1000000
WS_SIZE = 0x1100000

XN = 0
RING = 65536
RG = [0, 32768, 65536, 98304, 131072]
STAT_A = 24576
STAT_B = 26624
LDS_BYTES = 163840

EPS_BITS = 0x3727C5AC
QSCALE = 0.25 * 1.4426950408889634
GC0 = -2.0 * 1.4426950408889634 * 0.7978845608028654
GC1 = GC0 * 0.044715
NEG_BIG = 0xFF800000


def fbits(x):
    import struct
    return "0x%08x" % struct.unpack("<I", struct.pack("<f", x))[0]


def build(opt=O):
    p = Prog()
    V = Regs("v", 0, 256)
    A = Regs("a", 0, 256)
    S = Regs("s", 4, 102)
    tail = []
    nlabel = [0]

    def lab(base):
        nlabel[0] += 1
        return "L_%s_%d" % (base, nlabel[0])

    sX, sWQ, sWO, sW1, sW2, sOUT, sWS, sB1, sB2 = [S.alloc(n, 4, 4) for n in ("sX", "sWQ", "sWO", "sW1", "sW2", "sOUT", "sWS", "sB1", "sB2")]
    sK = S.alloc("sK", 24, 4)
    sW, sTG12, sJ12, sTG35, sJ35, sP4, sM4, sACT, sTAG = [S.alloc(n) for n in ("sW", "sTG12", "sJ12", "sTG35", "sJ35", "sP4", "sM4", "sACT", "sTAG")]
    sT = S.alloc("sT", 12, 2)
    sCnt = S.alloc("sCnt")
    sStamp = S.alloc("sStamp", 2, 2)
    sStOff = S.alloc("sStOff")

    lane = V.alloc("lane", 1, at=0)
    vL16 = V.alloc("vL16")
    vTmp = V.alloc("vTmp", 4, 2)
    vZero = V.alloc("vZero")
    vTag = V.alloc("vTag")
    vPoll = V.alloc("vPoll")
    vPollOff = V.alloc("vPollOff")
    vChk = V.alloc("vChk")
    vW2 = V.alloc("vW2", 4)
    vAt = V.alloc("vAt")
    vTW = V.alloc("vTW", 2)
    vOut = V.alloc("vOut")
    vRR_ = V.alloc("vRd", 2)
    vRWx = V.alloc("vRWx", 4)
    vOneP = V.alloc("vOneP")
    vRes = V.alloc("vRes", 8, 4)
    vB2 = V.alloc("vB2", 4, 4)
    vAx = V.alloc("vAx", 4, 4)
    nstamp = [0]

    def stamp(name):
        if not opt.stamps:
            return []
        k = nstamp[0]
        nstamp[0] += 1
        STAMP_NAMES.append(name)
        return [I("s_memtime %s" % sStamp.t()), I("s_waitcnt lgkmcnt(0)"),
                I("v_mov_b32 %s, %s" % (vSt[0], sStamp[0])),
                I("buffer_store_dword %s, %s, %s, %s offen offset:%d" % (vSt[0], vZero[0], sWS.t(), sStOff[0], 4 * k), "stamp")]
    if opt.stamps:
        vSt = V.alloc("vSt")

    def srd(dst, ptr, size):
        return ["s_mov_b32 %s, %s" % (dst[0], ptr[0]), "s_and_b32 %s, %s, 0xffff" % (dst[1], ptr[1]),
                "s_mov_b32 %s, %s" % (dst[2], size), "s_mov_b32 %s, 0x20000" % dst[3]]

    def flag_store(soff, tag="flag"):
        return [[I("s_mov_b64 exec, 1"),
                 I("buffer_store_dword %s, %s, %s, %s offen sc1" % (vTag[0], vZero[0], sWS.t(), soff), tag),
                 I("s_mov_b64 exec, -1")]]

    def poll_issue(voff, soff):
        return [I("buffer_load_dword %s, %s, %s, %s offen sc1" % (vPoll[0], voff, sWS.t(), soff), "poll")]

    def poll_check(voff, soff):
        retry, back = lab("retry"), lab("back")
        loop = retry + "_l"
        blk = Prog()
        blk.emit(["%s:" % retry,
                  "s_mov_b32 %s, 0" % sCnt[0],
                  "%s:" % loop,
                  "s_sleep 2"])
        blk.emit(I("buffer_load_dword %s, %s, %s, %s offen sc1" % (vPoll[0], voff, sWS.t(), soff)))
        blk.emit(["s_add_u32 %s, %s, 1" % (sCnt[0], sCnt[0]),
                  "s_waitcnt vmcnt(0)",
                  "v_cmp_ne_u32 vcc, %s, %s" % (sTAG[0], vPoll[0]),
                  "s_cmp_gt_u32 %s, %d" % (sCnt[0], opt.timeout),
                  "s_cbranch_scc1 %s" % back,
                  "s_cbranch_vccnz %s" % loop,
                  "s_branch %s" % back])
        tail.append(blk.out)
        return [I("v_cmp_ne_u32 vcc, %s, %s" % (sTAG[0], vPoll[0])),
                I("s_cbranch_vccnz %s" % retry),
                I("%s:" % back)]

    p("s_cmp_ge_u32 s2, 256", "s_cbranch_scc1 L_end")
    p("s_load_dwordx16 %s, s[0:1], 0" % sK.t(0, 16),
      "s_load_dwordx4 %s, s[0:1], 64" % sK.t(16, 4),
      "s_load_dwordx2 %s, s[0:1], 80" % sK.t(20, 2))
    if opt.stamps:
        p("s_memtime %s" % sStamp.t())
    p("v_lshrrev_b32 %s, 6, v0" % vTmp[0],
      "v_and_b32 v0, 63, v0",
      "v_readfirstlane_b32 %s, %s" % (sW[0], vTmp[0]),
      "v_lshlrev_b32 %s, 4, v0" % vL16[0],
      "v_mov_b32 %s, 0" % vZero[0])
    xcd, r = sT[0], sT[1]
    p("s_and_b32 %s, s2, 7" % xcd, "s_lshr_b32 %s, s2, 3" % r,
      "s_lshr_b32 %s, %s, 1" % (sT[2], xcd), "s_lshl_b32 %s, %s, 3" % (sT[3], sT[2]), "s_and_b32 %s, %s, 7" % (sT[4], r),
      "s_add_u32 %s, %s, %s" % (sTG12[0], sT[3], sT[4]),
      "s_and_b32 %s, %s, 1" % (sT[3], xcd), "s_lshl_b32 %s, %s, 2" % (sT[4], sT[3]), "s_lshr_b32 %s, %s, 3" % (sT[5], r),
      "s_add_u32 %s, %s, %s" % (sJ12[0], sT[4], sT[5]),
      "s_and_b32 %s, %s, 3" % (sT[4], r), "s_lshl_b32 %s, %s, 2" % (sT[5], xcd), "s_add_u32 %s, %s, %s" % (sTG35[0], sT[5], sT[4]),
      "s_lshr_b32 %s, %s, 2" % (sJ35[0], r),
      "s_lshl_b32 %s, %s, 2" % (sT[5], sT[2]), "s_add_u32 %s, %s, %s" % (sP4[0], sT[5], sT[4]),
      "s_mul_i32 %s, %s, 7" % (sT[5], sT[3]), "s_add_u32 %s, %s, %s" % (sM4[0], sT[5], sJ35[0]),
      "s_cmp_lt_u32 %s, 7" % sJ35[0], "s_cselect_b32 %s, 1, 0" % sACT[0])
    sXo = S.alloc("sXo", 4)
    p("s_lshl_b32 %s, %s, 16" % (sT[2], sTG12[0]), "s_lshl_b32 %s, %s, 14" % (sT[3], sW[0]),
      "s_add_u32 %s, %s, %s" % (sXo[0], sT[2], sT[3]),
      "s_add_u32 %s, %s, 4096" % (sXo[1], sXo[0]), "s_add_u32 %s, %s, 8192" % (sXo[2], sXo[0]), "s_add_u32 %s, %s, 12288" % (sXo[3], sXo[0]))
    vKV = V.alloc("vKV", 4)
    vRow, vCh = vTmp[0], vTmp[1]
    p("v_lshrrev_b32 %s, 3, v0" % vRow, "v_and_b32 %s, 7, v0" % vCh,
      "v_bfe_u32 %s, v0, 4, 1" % vTmp[2], "v_lshlrev_b32 %s, 2, %s" % (vTmp[2], vTmp[2]),
      "v_xor_b32 %s, %s, %s" % (vCh, vCh, vTmp[2]), "v_lshlrev_b32 %s, 4, %s" % (vCh, vCh),
      "v_mul_u32_u24 %s, 3072, %s" % (vKV[0], vRow), "v_add_u32 %s, %s, %s" % (vKV[0], vKV[0], vCh))
    p("v_lshl_add_u32 %s, %s, 10, %s" % (vW2[0], vRow, vCh))
    for i in range(1, 4):
        p("v_add_u32 %s, %d, %s" % (vKV[i], i * (8 * 3072 - 1024), vKV[0]),
          "v_add_u32 %s, %d, %s" % (vW2[i], i * (8 * 1024 - 1024), vW2[0]))
    p(srd(sX, sK.sub(0, 2), 2048 * 1024))
    if opt.stamps:
        p("s_lshl_b32 %s, s2, 2" % sT[2], "s_add_u32 %s, %s, %s" % (sT[2], sT[2], sW[0]), "s_lshl_b32 %s, %s, 8" % (sT[2], sT[2]),
          "s_add_u32 %s, %s, %d" % (sStOff[0], sT[2], STAMPS))
    vX = V.alloc("vX", 64, 4)
    for i in range(16):
        p(I("buffer_load_dwordx4 %s, %s, %s, %s offen offset:%d" % (vX.t(4 * i, 4), vL16[0], sX.t(), sXo[i >> 2], (i & 3) * 1024), "x%d" % i))
    S.free("sXo")
    p(srd(sWQ, sK.sub(2, 2), 512 * 3072), srd(sWS, sK.sub(20, 2), WS_SIZE if opt.stamps else WS_END))
    p("s_load_dword %s, %s, 0" % (sTAG[0], sK.t(20, 2)))
    if opt.stamps:
        STAMP_NAMES.append("start")
        nstamp[0] += 1
        p("v_mov_b32 %s, %s" % (vSt[0], sStamp[0]),
          I("buffer_store_dword %s, %s, %s, %s offen" % (vSt[0], vZero[0], sWS.t(), sStOff[0]), "stamp"))
    sKVo, sKVm, sQo, sQm = [S.alloc(n) for n in ("sKVo", "sKVm", "sQo", "sQm")]
    p("s_and_b32 %s, %s, 1" % (sT[2], sW[0]), "s_mul_i32 %s, %s, %d" % (sT[2], sT[2], 32 * 3072),
      "s_lshr_b32 %s, %s, 1" % (sT[3], sW[0]), "s_lshl_b32 %s, %s, 10" % (sT[3], sT[3]),
      "s_lshl_b32 %s, %s, 7" % (sT[4], sJ12[0]),
      "s_add_u32 %s, %s, %s" % (sKVo[0], sT[2], sT[3]), "s_add_u32 %s, %s, %s" % (sKVo[0], sKVo[0], sT[4]), "s_add_u32 %s, %s, 1024" % (sKVo[0], sKVo[0]),
      "s_lshl_b32 %s, %s, 12" % (sKVm[0], sW[0]), "s_add_u32 %s, %s, %d" % (sKVm[0], sKVm[0], RING),
      "s_mul_i32 %s, %s, %d" % (sT[2], sW[0], 16 * 3072), "s_add_u32 %s, %s, %s" % (sQo[0], sT[2], sT[4]),
      "s_lshl_b32 %s, %s, 11" % (sQm[0], sW[0]), "s_add_u32 %s, %s, %d" % (sQm[0], sQm[0], RING + 32768))

    def kv_chunk(c):
        slot = c % 6
        out = [I("s_add_u32 m0, %s, %d" % (sKVm[0], slot * 16384)), I("s_add_u32 %s, %s, %d" % (sT[6], sKVo[0], c * 64 * 3072))]
        out += [I("buffer_load_dwordx4 %s, %s, %s offen offset:%d lds" % (vKV[i], sWQ.t(), sT[6], 1024 * i), "kv%d" % c) for i in range(4)]
        return out

    def q_chunk(c):
        out = [I("s_add_u32 m0, %s, %d" % (sQm[0], c * 8192)), I("s_add_u32 %s, %s, %d" % (sT[6], sQo[0], c * 64 * 3072))]
        out += [I("buffer_load_dwordx4 %s, %s, %s offen offset:%d lds" % (vKV[i], sWQ.t(), sT[6], 1024 * i), "q%d" % c) for i in range(2)]
        return out

    p(kv_chunk(0), kv_chunk(1))
    p(srd(sWO, sK.sub(4, 2), 512 * 1024), srd(sW2, sK.sub(12, 2), 1792 * 1024), srd(sOUT, sK.sub(16, 2), 2048 * 1024),
      srd(sB1, sK.sub(10, 2), 1792 * 2), srd(sB2, sK.sub(14, 2), 512 * 2))
    p("s_cmp_eq_u32 %s, 1" % sACT[0], "s_cselect_b32 %s, %d, 0" % (sT[2], 512 * 3584))
    p(srd(sW1, sK.sub(8, 2), sT[2]))
    sDBG = S.alloc("sDBG", 4, 4)
    p("s_cmp_eq_u32 %s, 0" % sW[0], "s_cselect_b32 %s, 256, 0" % sT[2])
    p(srd(sDBG, sK.sub(18, 2), sT[2]))
    S.free("sK")
    if opt.prefetch_code:
        sPC = S.alloc("sPC", 2, 2)
        p("s_getpc_b64 %s" % sPC.t(), "L_pcref:",
          "s_lshl_b32 %s, %s, 2" % (sT[2], r), "s_add_u32 %s, %s, %s" % (sT[2], sT[2], sW[0]),
          "s_lshl_b32 %s, %s, 13" % (sT[2], sT[2]),
          "v_lshl_add_u32 %s, v0, 7, %s" % (vTmp[0], sT[2]),
          "v_min_u32 %s, L_codeend-L_pcref-4, %s" % (vTmp[0], vTmp[0]))
        p(I("global_load_dword %s, %s, %s" % (vChk[0], vTmp[0], sPC.t()), "pf"))
        S.free("sPC")
    aK = A.alloc("aK", 40, 4)
    aV = A.alloc("aV", 80, 4)
    aWo = A.alloc("aWo", 64, 4)
    aW2e = A.alloc("aW2e", 72, 4)
    p("v_mov_b32 %s, 0x3f803f80" % vTmp[2])
    init = [I("v_accvgpr_write_b32 %s, %s" % (aV[i], vTmp[2])) for i in range(80)]
    vMD = V.alloc("vMD", 16, 4)
    vMW = V.alloc("vMW", 16, 4)
    vA1 = V.alloc("vA1", 4, 4)
    vB1 = V.alloc("vB1", 8, 4)
    vq, vh4, vneg = vTmp[0], vTmp[1], vTmp[3]
    init += [I("v_and_b32 %s, 31, v0" % vq), I("v_lshrrev_b32 %s, 5, v0" % vh4), I("v_lshlrev_b32 %s, 2, %s" % (vh4, vh4)),
             I("v_sub_u32 %s, %s, %s" % (vq, vq, vh4)), I("v_mov_b32 %s, 0x%x" % (vneg, NEG_BIG))]
    for rr in range(16):
        kl = 8 * (rr >> 2) + (rr & 3)
        init += [I("v_cmp_le_i32 vcc, %d, %s" % (kl, vq)),
                 I("v_cndmask_b32 %s, %s, %s, vcc" % (vMD[rr], vneg, vZero[0])),
                 I("v_cndmask_b32 %s, %s, %s, vcc" % (vMW[rr], vZero[0], vneg))]
    init += [I("v_cmp_gt_u32 vcc, 32, v0"), I("v_mov_b32 %s, 0x3f80" % vTmp[2]),
             I("v_cndmask_b32 %s, %s, %s, vcc" % (vA1[0], vZero[0], vTmp[2]))]
    init += [I("v_mov_b32 %s, 0" % vA1[i]) for i in (1, 2, 3)] + [I("v_mov_b32 %s, 0" % vB1[i]) for i in (1, 2, 3, 5, 6, 7)]
    p(init)
    p(stamp("init"))
    p("s_add_u32 %s, %s, 0x9e3779b9" % (sTAG[0], sTAG[0]), "v_mov_b32 %s, %s" % (vTag[0], sTAG[0]))

    vLo = V.alloc("vLo")
    vHi = V.alloc("vHi")
    vS = V.alloc("vS", 16)
    vQ = V.alloc("vQ", 16)
    p("v_mov_b32 %s, 0x3f803f80" % vOneP[0], "v_mov_b32 %s, 0x00003f80" % vLo[0], "v_mov_b32 %s, 0x3f800000" % vHi[0])
    dma_rest = [kv_chunk(c) for c in (2, 3, 4, 5)]
    for i in range(16):
        for j in range(4):
            x = vX[4 * i + j]
            if j == 0:
                p("v_dot2_f32_bf16 %s, %s, %s, 0" % (vS[i], x, vOneP[0]), "v_dot2_f32_bf16 %s, %s, %s, 0" % (vQ[i], x, x))
            else:
                p("v_dot2_f32_bf16 %s, %s, %s, %s" % (vS[i], x, vOneP[0], vS[i]), "v_dot2_f32_bf16 %s, %s, %s, %s" % (vQ[i], x, x, vQ[i]))
        if i % 4 == 3:
            p(dma_rest[i // 4])
    p(stamp("xland"))
    for v in (vS, vQ):
        for k in range(8):
            p("v_permlane32_swap_b32 %s, %s" % (v[k], v[k + 8]))
    for v in (vS, vQ):
        for k in range(8):
            p("v_add_f32 %s, %s, %s" % (v[k], v[k], v[k + 8]))
    for v in (vS, vQ):
        for k in range(4):
            p("v_permlane16_swap_b32 %s, %s" % (v[k], v[k + 4]))
    for v in (vS, vQ):
        for k in range(4):
            p("v_add_f32 %s, %s, %s" % (v[k], v[k], v[k + 4]))
    for (lo_, m) in ((0, 0x3), (2, 0xc)):
        for v in (vS, vQ):
            for k in range(2):
                p("v_add_f32_dpp %s, %s, %s row_ror:8 row_mask:0xf bank_mask:0x%x" % (v[8 + k], v[k + lo_], v[k + lo_], m))
    for (k, m) in ((0, 0x5), (1, 0xa)):
        for v in (vS, vQ):
            p("v_add_f32_dpp %s, %s, %s row_half_mirror row_mask:0xf bank_mask:0x%x" % (v[10], v[8 + k], v[8 + k], m))
    for qp, (a_, b_) in (("[1,0,3,2]", (10, 11)), ("[2,3,0,1]", (11, 12))):
        for v in (vS, vQ):
            p("v_add_f32_dpp %s, %s, %s quad_perm:%s row_mask:0xf bank_mask:0xf" % (v[b_], v[a_], v[a_], qp))
    mean, ex2, var, rs = vS[0], vQ[0], vS[1], vS[2]
    p("v_mul_f32 %s, %s, %s" % (mean, fbits(1.0 / 512), vS[12]),
      "v_mul_f32 %s, %s, %s" % (ex2, fbits(1.0 / 512), vQ[12]),
      "v_fma_f32 %s, -%s, %s, %s" % (var, mean, mean, ex2),
      "v_max_f32 %s, 0, %s" % (var, var))
    if opt.mimic_ln1:
        t = vS[3]
        p("v_cvt_pk_bf16_f32 %s, %s, %s" % (t, mean, var),
          "v_lshlrev_b32 %s, 16, %s" % (mean, t), "v_and_b32 %s, 0xffff0000, %s" % (var, t),
          "v_add_f32 %s, 0x%x, %s" % (var, EPS_BITS, var),
          "v_cvt_pk_bf16_f32 %s, %s, %s" % (t, var, var), "v_lshlrev_b32 %s, 16, %s" % (var, t),
          "v_sqrt_f32 %s, %s" % (var, var),
          "v_cvt_pk_bf16_f32 %s, %s, %s" % (t, var, var), "v_lshlrev_b32 %s, 16, %s" % (var, t),
          "v_rcp_f32 %s, %s" % (rs, var))
    else:
        p("v_add_f32 %s, 0x%x, %s" % (var, EPS_BITS, var), "v_rsq_f32 %s, %s" % (rs, var))
    p("v_sub_f32 %s, 0, %s" % (mean, mean))
    vXW = V.alloc("vXW", 2)
    p("v_and_b32 %s, 7, v0" % vTmp[0], "v_lshlrev_b32 %s, 4, %s" % (vTmp[0], vTmp[0]),
      "v_lshl_add_u32 %s, v0, 9, %s" % (vTmp[0], vTmp[0]),
      "s_lshr_b32 %s, %s, 1" % (sT[2], sW[0]), "s_lshl_b32 %s, %s, 15" % (sT[2], sT[2]),
      "s_and_b32 %s, %s, 1" % (sT[3], sW[0]), "s_lshl_b32 %s, %s, 8" % (sT[3], sT[3]), "s_add_u32 %s, %s, %s" % (sT[2], sT[2], sT[3]),
      "v_add_u32 %s, %s, %s" % (vTmp[0], sT[2], vTmp[0]))
    vN = V.alloc("vN", 8, 2)
    sRow = S.alloc("sRow", 8, 2)

    def rl(i):
        o = 4 * (i & 1)
        return [I("v_readlane_b32 %s, %s, %d" % (sRow[o], mean, 4 * i)), I("v_readlane_b32 %s, %s, %d" % (sRow[o + 2], rs, 4 * i))]
    p(rl(0))
    for i in range(16):
        o = 4 * (i & 1)
        if i + 1 < 16:
            p(rl(i + 1))
        p("v_xor_b32 %s, %d, %s" % (vXW[i & 1], (i & 7) << 4, vTmp[0]))
        for j in range(4):
            x = vX[4 * i + j]
            p("v_dot2_f32_bf16 %s, %s, %s, %s" % (vN[2 * j], x, vLo[0], sRow[o]),
              "v_dot2_f32_bf16 %s, %s, %s, %s" % (vN[2 * j + 1], x, vHi[0], sRow[o]))
        for j in range(4):
            p("v_pk_mul_f32 %s, %s, %s op_sel_hi:[1,0]" % (vN.t(2 * j, 2), vN.t(2 * j, 2), sRow.t(o + 2, 2)))
        for j in range(4):
            p("v_cvt_pk_bf16_f32 %s, %s, %s" % (vX[4 * i + j], vN[2 * j], vN[2 * j + 1]))
        p(I("ds_write_b128 %s, %s offset:%d" % (vXW[i & 1], vX.t(4 * i, 4), XN + (i >> 3) * 128), "xnw"))
    V.free("vS", "vQ", "vN", "vXW", "vLo", "vHi", "vX")
    S.free("sRow")
    p(stamp("ln"))

    vXR = V.alloc("vXR", 4)
    vTR = V.alloc("vTR", 2)
    g_, t_ = vTmp[0], vTmp[1]
    vTRb = V.alloc("vTRb")
    vRR = V.alloc("vRR")
    p("v_bfe_u32 %s, v0, 2, 2" % vRR[0],
      "v_and_b32 %s, 3, v0" % g_, "v_lshlrev_b32 %s, 3, %s" % (g_, g_),
      "v_bfe_u32 %s, v0, 4, 1" % t_, "v_lshl_add_u32 %s, %s, 5, %s" % (vTRb[0], t_, g_))
    p("v_lshrrev_b32 %s, 5, v0" % g_, "v_lshl_add_u32 %s, %s, 3, %s" % (g_, g_, vRR[0]), "v_lshl_add_u32 %s, %s, 7, %s" % (g_, g_, vTRb[0]),
      "v_lshrrev_b32 %s, 1, %s" % (t_, vRR[0]), "s_lshr_b32 %s, %s, 1" % (sT[2], sW[0]), "v_xor_b32 %s, %s, %s" % (t_, sT[2], t_),
      "v_lshl_add_u32 %s, %s, 6, %s" % (g_, t_, g_),
      "v_add_u32 %s, %d, %s" % (vTR[0], RING, g_), "v_add_u32 %s, %d, %s" % (vTR[1], RING + 65536, g_))
    vTRQ = V.alloc("vTRQ", 2)
    p("s_and_b32 %s, %s, 1" % (sT[2], sW[0]), "s_lshl_b32 %s, %s, 5" % (sT[2], sT[2]),
      "v_xor_b32 %s, %s, %s" % (g_, sT[2], g_),
      "v_add_u32 %s, %d, %s" % (vTRQ[0], RING + 32768, g_), "v_add_u32 %s, %d, %s" % (vTRQ[1], RING + 32768 + 32768, g_))
    p("v_lshrrev_b32 %s, 5, v0" % g_, "v_and_b32 %s, 31, v0" % t_, "v_xor_b32 %s, %s, %s" % (t_, t_, g_),
      "v_lshlrev_b32 %s, 4, %s" % (t_, t_), "v_lshl_add_u32 %s, %s, 9, %s" % (t_, g_, t_))
    vXR0 = V.alloc("vXR0", 4)
    for k in range(4):
        p("v_xor_b32 %s, %d, %s" % (vXR0[k], k << 5, t_))
    p("s_and_b32 %s, %s, 1" % (sT[2], sW[0]), "s_lshl_b32 %s, %s, 15" % (sT[2], sT[2]))
    for k in range(4):
        p("v_add_u32 %s, %s, %s" % (vXR[k], sT[2], vXR0[k]))

    accK = V.alloc("accK", 16, 4)
    accV = V.alloc("accV", 16, 4)
    NB = 3
    fx = V.alloc("fx", 4 * NB, 4)
    fy = V.alloc("fy", 4 * NB, 4)
    fw = V.alloc("fw", 4 * NB, 4)

    def p1_reads(s):
        c, sl = s >> 2, s & 3
        slot = c % 6
        base = vTR[0] if slot < 4 else vTR[1]
        off = (slot % 4) * 16384 + sl * 2048
        b = s % NB
        return [I("ds_read_b128 %s, %s offset:%d" % (fx.t(4 * b, 4), vXR[s & 3], XN + s * 1024)),
                I("ds_read_b64_tr_b16 %s, %s offset:%d" % (fw.t(4 * b, 2), base, off)),
                I("ds_read_b64_tr_b16 %s, %s offset:%d" % (fw.t(4 * b + 2, 2), base, off + 512)),
                I("ds_read_b64_tr_b16 %s, %s offset:%d" % (fy.t(4 * b, 2), base, off + 8192)),
                I("ds_read_b64_tr_b16 %s, %s offset:%d" % (fy.t(4 * b + 2, 2), base, off + 8192 + 512))]

    def p2_reads(s):
        c, sl = s >> 2, s & 3
        base = vTRQ[0] if c < 4 else vTRQ[1]
        off = (c % 4) * 8192 + sl * 2048
        b = s % NB
        return [I("ds_read_b128 %s, %s offset:%d" % (fx.t(4 * b, 4), vXR0[s & 3], XN + s * 1024)),
                I("ds_read_b64_tr_b16 %s, %s offset:%d" % (fw.t(4 * b, 2), base, off)),
                I("ds_read_b64_tr_b16 %s, %s offset:%d" % (fw.t(4 * b + 2, 2), base, off + 512)),
                I("ds_read_b128 %s, %s offset:%d" % (fy.t(4 * b, 4), vXR0[s & 3], XN + 32768 + s * 1024))]

    p(Wait("xnw", "kv0", "kv1"), "s_barrier")
    p(stamp("b0"))
    p("v_mov_b32 %s, 1" % vAt[0], "s_mov_b64 exec, 1")
    p(I("buffer_atomic_add %s, %s, %s, 0 offen sc0 sc1" % (vAt[0], vZero[0], sDBG.t()), "at"))
    p("s_mov_b64 exec, -1")
    S.free("sDBG")
    p(p1_reads(0), p1_reads(1))
    for s in range(32):
        b = s % NB
        c = s >> 2
        if (s & 3) == 2:
            nxt = ["kv%d" % (c + 1)] if c + 1 < 8 else ["q0", "q1", "q2", "q3"]
            p(Wait(*nxt, lgkm=False), "s_barrier")
        rd = p1_reads(s + 2) if s + 2 < 32 else p2_reads(s + 2 - 32)
        if s + 2 >= 32:
            rd = None
        mk = I("v_mfma_f32_32x32x16_bf16 %s, %s, %s, %s" % (accK.t(), fw.t(4 * b, 4), fx.t(4 * b, 4), "0" if s == 0 else accK.t()))
        mv = I("v_mfma_f32_32x32x16_bf16 %s, %s, %s, %s" % (accV.t(), fx.t(4 * b, 4), fy.t(4 * b, 4), "0" if s == 0 else accV.t()))
        extra = []
        if (s & 3) == 2:
            if c == 1:
                extra = kv_chunk(6)
            elif c == 2:
                extra = kv_chunk(7)
            elif 3 <= c <= 6:
                extra = q_chunk(2 * (c - 3)) + q_chunk(2 * (c - 3) + 1)
        p(mk)
        if rd:
            p(rd[:3])
        p(extra[:len(extra) // 2])
        p(mv)
        if rd:
            p(rd[3:])
        p(extra[len(extra) // 2:])
    p(stamp("p1"))

    accQ = V.alloc("accQ", 32, 4)
    vPk = V.alloc("vPk", 16, 4)
    vVst = V.alloc("vVst")
    sKst, sVst, sFl, sWoO, sWoM = [S.alloc(n) for n in ("sKst", "sVst", "sFl", "sWoO", "sWoM")]
    pre = ["s_and_b32 %s, %s, 1" % (sT[2], sW[0]), "s_lshl_b32 %s, %s, 1" % (sT[3], sTG12[0]), "s_add_u32 %s, %s, %s" % (sT[2], sT[2], sT[3]),
           "s_lshl_b32 %s, %s, 5" % (sT[2], sT[2]),
           "s_lshl_b32 %s, %s, 2" % (sT[3], sJ12[0]), "s_and_b32 %s, %s, 2" % (sT[4], sW[0]), "s_add_u32 %s, %s, %s" % (sT[3], sT[3], sT[4]),
           "s_add_u32 %s, %s, %s" % (sT[2], sT[2], sT[3]), "s_lshl_b32 %s, %s, 10" % (sT[2], sT[2]),
           "s_add_u32 %s, %s, %d" % (sKst[0], sT[2], KBUF), "s_add_u32 %s, %s, %d" % (sVst[0], sT[2], VBUF),
           "v_and_b32 %s, 15, v0" % vTmp[0], "v_lshlrev_b32 %s, 4, %s" % (vTmp[0], vTmp[0]),
           "v_lshrrev_b32 %s, 5, v0" % vTmp[1], "v_lshl_add_u32 %s, %s, 8, %s" % (vTmp[0], vTmp[1], vTmp[0]),
           "v_bfe_u32 %s, v0, 4, 1" % vTmp[1], "v_lshl_add_u32 %s, %s, 10, %s" % (vVst[0], vTmp[1], vTmp[0]),
           "s_lshl_b32 %s, %s, 5" % (sT[2], sJ12[0]), "s_add_u32 %s, %s, %s" % (sT[2], sT[2], sTG12[0]), "s_lshl_b32 %s, %s, 2" % (sT[2], sT[2]),
           "s_add_u32 %s, %s, %s" % (sT[2], sT[2], sW[0]), "s_lshl_b32 %s, %s, 2" % (sT[2], sT[2]), "s_add_u32 %s, %s, %d" % (sFl[0], sT[2], F_KV),
           "s_lshl_b32 %s, %s, 17" % (sT[2], sW[0]), "s_lshl_b32 %s, %s, 7" % (sT[3], sJ35[0]), "s_add_u32 %s, %s, %s" % (sWoO[0], sT[2], sT[3]),
           "s_lshl_b32 %s, %s, 13" % (sT[2], sW[0]), "s_add_u32 %s, %s, %d" % (sWoM[0], sT[2], RING)]
    pre = [I(x) for x in pre]
    epi = []
    for k in range(8):
        epi.append(I("v_cvt_pk_bf16_f32 %s, %s, %s" % (vPk[k], accK[2 * k], accK[2 * k + 1])))
    epi.append(I("buffer_store_dwordx4 %s, %s, %s, %s offen sc1" % (vPk.t(0, 4), vL16[0], sWS.t(), sKst[0]), "kvst"))
    epi.append(I("buffer_store_dwordx4 %s, %s, %s, %s offen offset:1024 sc1" % (vPk.t(4, 4), vL16[0], sWS.t(), sKst[0]), "kvst"))
    for k in range(8):
        epi.append(I("v_cvt_pk_bf16_f32 %s, %s, %s" % (vPk[8 + k], accV[2 * k], accV[2 * k + 1])))
    epi.append(I("buffer_store_dwordx4 %s, %s, %s, %s offen sc1" % (vPk.t(8, 4), vVst[0], sWS.t(), sVst[0]), "kvst"))
    epi.append(I("buffer_store_dwordx4 %s, %s, %s, %s offen offset:512 sc1" % (vPk.t(12, 4), vVst[0], sWS.t(), sVst[0]), "kvst"))

    def rows_dma(srd_, sm, moff, so, ooff, n, tag):
        out = []
        for g0 in range(0, n, 4):
            out += [I("s_add_u32 m0, %s, %d" % (sm, moff + g0 * 1024)), I("s_add_u32 %s, %s, %d" % (sT[6], so, ooff + g0 * 8192))]
            out += [I("buffer_load_dwordx4 %s, %s, %s offen offset:%d lds" % (vW2[i], srd_.t(), sT[6], 1024 * i), tag) for i in range(min(4, n - g0))]
        return out

    sKVp = S.alloc("sKVp")
    pollpre = [I("v_min_u32 %s, 19, v0" % vPollOff[0]), I("s_lshl_b32 %s, %s, 2" % (sT[2], sTG12[0])), I("s_sub_u32 %s, %s, 16" % (sT[2], sT[2])),
               I("v_add_u32 %s, %s, %s" % (vPollOff[0], sT[2], vPollOff[0])), I("v_max_i32 %s, 0, %s" % (vPollOff[0], vPollOff[0])),
               I("v_lshlrev_b32 %s, 2, %s" % (vPollOff[0], vPollOff[0])),
               I("s_lshl_b32 %s, %s, 9" % (sT[2], sJ12[0])), I("s_add_u32 %s, %s, %d" % (sKVp[0], sT[2], F_KV))]

    p(pre)
    def p2r(s):
        r_ = p2_reads(s)
        return r_
    p(p2r(0), p2r(1))
    for s in range(32):
        b = s % NB
        if s == 2:
            p("s_barrier")
        if s == 14:
            p(Wait("q4", "q5", "q6", "q7", lgkm=False), "s_barrier")
        if s == 18:
            p("s_barrier")
        rd = p2r(s + 2) if s + 2 < 32 else []
        ma = I("v_mfma_f32_32x32x16_bf16 %s, %s, %s, %s" % (accQ.t(0, 16), fw.t(4 * b, 4), fx.t(4 * b, 4), "0" if s == 0 else accQ.t(0, 16)))
        mb = I("v_mfma_f32_32x32x16_bf16 %s, %s, %s, %s" % (accQ.t(16, 16), fw.t(4 * b, 4), fy.t(4 * b, 4), "0" if s == 0 else accQ.t(16, 16)))
        extra = []
        if 1 <= s <= 3:
            n = len(epi)
            extra = epi[(s - 1) * n // 3: s * n // 3]
        if s == 4:
            extra = rows_dma(sWO, sWoM[0], 0, sWoO[0], 0, 8, "wo0")
        if s == 8:
            extra = pollpre
        if s == opt.kv_flag_step:
            extra = extra + [Wait("kvst")] + flag_store(sFl[0])
        if s == 19:
            extra = extra + rows_dma(sWO, sWoM[0], 32768, sWoO[0], 65536, 8, "wo1")
        if s == opt.kv_poll_step:
            extra = extra + poll_issue(vPollOff[0], sKVp[0])
        p(ma)
        p(rd[:2])
        p(extra[:len(extra) // 2])
        p(mb)
        p(rd[2:])
        p(extra[len(extra) // 2:])
    p(stamp("p2"))
    V.free("accK", "accV", "fx", "fy", "fw", "vXR", "vXR0", "vTR", "vTRQ", "vPk", "vKV", "vVst")
    S.free("sKVo", "sKVm", "sQo", "sQm", "sKst", "sVst")

    sKo = S.alloc("sKo", 10)
    vVld = V.alloc("vVld")
    pre = []
    pre += ["s_lshl_b32 %s, %s, 2" % (sT[3], sJ12[0]), "s_add_u32 %s, %s, %s" % (sT[3], sT[3], sW[0]), "s_lshl_b32 %s, %s, 10" % (sT[3], sT[3]),
            "s_lshl_b32 %s, %s, 1" % (sT[2], sTG12[0])]
    for i in range(10):
        pre += ["s_add_i32 %s, %s, %d" % (sT[4], sT[2], i - 8), "s_max_i32 %s, %s, 0" % (sT[4], sT[4]), "s_lshl_b32 %s, %s, 15" % (sT[4], sT[4]),
                "s_add_u32 %s, %s, %s" % (sKo[i], sT[4], sT[3])]
    pre += ["v_and_b32 %s, 15, v0" % vTmp[0], "v_lshlrev_b32 %s, 4, %s" % (vTmp[0], vTmp[0]),
            "v_lshrrev_b32 %s, 5, v0" % vTmp[1], "v_lshl_add_u32 %s, %s, 8, %s" % (vVld[0], vTmp[1], vTmp[0]),
            "v_add_u32 %s, %d, %s" % (vVld[0], VBUF, vVld[0])]
    vKld = V.alloc("vKld")
    pre += ["v_add_u32 %s, %d, %s" % (vKld[0], KBUF, vL16[0])]
    p(pre)
    p(poll_check(vPollOff[0], sKVp[0]))
    p(stamp("kvflag"))
    for i in range(9, -1, -1):
        p(I("buffer_load_dwordx4 %s, %s, %s, %s offen sc1" % (aK.t(4 * i, 4), vKld[0], sWS.t(), sKo[i]), "k%d" % i))
    vQf = V.alloc("vQf", 8, 4)
    for X in range(2):
        for k in range(8):
            p("v_mul_f32 %s, %s, %s" % (accQ[16 * X + k], fbits(QSCALE), accQ[16 * X + k]))
        for k in range(4):
            p("v_cvt_pk_bf16_f32 %s, %s, %s" % (vQf[4 * X + k], accQ[16 * X + 2 * k], accQ[16 * X + 2 * k + 1]))
    V.free("accQ")
    p("s_mov_b32 exec_lo, 0xffff", "s_mov_b32 exec_hi, 0xffff")
    for i in range(9, -1, -1):
        for ks in range(2):
            p(I("buffer_load_dwordx4 %s, %s, %s, %s offen offset:%d sc1" % (aV.t(8 * i + 4 * ks, 4), vVld[0], sWS.t(), sKo[i], 512 * ks), "v%d" % i))
    p("s_mov_b64 exec, -1")
    S.free("sKo")
    V.free("vVld", "vKld")
    p("v_lshrrev_b32 %s, 5, v0" % vTmp[0], "v_lshl_add_u32 %s, %s, 2, %s" % (vTmp[0], vTmp[0], vRR[0]),
      "v_lshl_add_u32 %s, %s, 7, %s" % (vTmp[0], vTmp[0], vTRb[0]),
      "v_lshrrev_b32 %s, 1, %s" % (vTmp[1], vRR[0]), "v_lshl_add_u32 %s, %s, 6, %s" % (vTW[0], vTmp[1], vTmp[0]),
      "v_xor_b32 %s, 64, %s" % (vTW[1], vTW[0]))
    vTWo = V.alloc("vTWo", 2)
    p("v_add_u32 %s, %s, %s" % (vTWo[0], sWoM[0], vTW[0]), "v_add_u32 %s, %s, %s" % (vTWo[1], sWoM[0], vTW[1]))
    p(Wait("wo0", "wo1", lgkm=False))
    for s in range(8):
        for ct in range(2):
            off = (s >> 2) * 32768 + (s & 3) * 2048
            fr = aWo.sub(8 * s + 4 * ct, 4)
            p(I("ds_read_b64_tr_b16 %s, %s offset:%d" % (fr.t(0, 2), vTWo[ct], off), "wotr"),
              I("ds_read_b64_tr_b16 %s, %s offset:%d" % (fr.t(2, 2), vTWo[ct], off + 1024), "wotr"))
    V.free("vTWo")
    S.free("sWoO", "sWoM")
    sW2o, sW2m, sW1o, sW1m = [S.alloc(n) for n in ("sW2o", "sW2m", "sW1o", "sW1m")]
    vW1 = V.alloc("vW1", 4)
    p("s_mul_i32 %s, %s, %d" % (sT[2], sW[0], 448 * 1024), "s_lshl_b32 %s, %s, 7" % (sT[3], sJ35[0]), "s_add_u32 %s, %s, %s" % (sW2o[0], sT[2], sT[3]),
      "s_mul_i32 %s, %s, 6144" % (sW2m[0], sW[0]),
      "s_mul_i32 %s, %s, %d" % (sT[2], sW[0], 128 * 3584), "s_lshl_b32 %s, %s, 8" % (sT[3], sM4[0]), "s_add_u32 %s, %s, %s" % (sW1o[0], sT[2], sT[3]),
      "s_lshl_b32 %s, %s, 15" % (sT[2], sW[0]), "s_add_u32 %s, %s, %d" % (sW1m[0], sT[2], RG[1]),
      "v_lshrrev_b32 %s, 4, v0" % vTmp[0], "v_lshlrev_b32 %s, 2, %s" % (vTmp[1], vTmp[0]), "v_and_b32 %s, 15, v0" % vTmp[2],
      "v_xor_b32 %s, %s, %s" % (vTmp[1], vTmp[1], vTmp[2]), "v_lshlrev_b32 %s, 4, %s" % (vTmp[1], vTmp[1]),
      "v_mul_u32_u24 %s, 3584, %s" % (vW1[0], vTmp[0]), "v_add_u32 %s, %s, %s" % (vW1[0], vW1[0], vTmp[1]))
    for i in range(1, 4):
        p("v_add_u32 %s, %d, %s" % (vW1[i], i * (4 * 3584 - 1024), vW1[0]))
    vTE = V.alloc("vTE", 2)
    p("v_add_u32 %s, %s, %s" % (vTE[0], sW2m[0], vTW[0]), "v_add_u32 %s, %s, %s" % (vTE[1], sW2m[0], vTW[1]))
    sOo = S.alloc("sOo")
    p("v_lshrrev_b32 %s, 3, v0" % vTmp[0], "v_and_b32 %s, 7, v0" % vTmp[1], "v_lshlrev_b32 %s, 4, %s" % (vTmp[1], vTmp[1]),
      "v_lshl_add_u32 %s, %s, 10, %s" % (vOut[0], vTmp[0], vTmp[1]),
      "s_lshl_b32 %s, %s, 16" % (sT[2], sTG35[0]), "s_lshl_b32 %s, %s, 13" % (sT[3], sW[0]), "s_add_u32 %s, %s, %s" % (sT[2], sT[2], sT[3]),
      "s_lshl_b32 %s, %s, 7" % (sT[3], sJ35[0]), "s_add_u32 %s, %s, %s" % (sOo[0], sT[2], sT[3]), "s_add_u32 %s, %s, 32768" % (sT[4], sOo[0]))
    p(I("buffer_load_dwordx4 %s, %s, %s, %s offen" % (vRes.t(0, 4), vOut[0], sX.t(), sOo[0]), "res"),
      I("buffer_load_dwordx4 %s, %s, %s, %s offen" % (vRes.t(4, 4), vOut[0], sX.t(), sT[4]), "res"),
      I("buffer_load_dwordx4 %s, %s, %s, %s offen" % (vB2.t(), vTmp[1], sB2.t(), sT[3]), "res"))
    vB1v = V.alloc("vB1v")
    p("v_and_b32 %s, 31, v0" % vTmp[0], "v_lshlrev_b32 %s, 1, %s" % (vTmp[0], vTmp[0]),
      "s_lshl_b32 %s, %s, 8" % (sT[2], sM4[0]), "s_lshl_b32 %s, %s, 6" % (sT[3], sW[0]), "s_add_u32 %s, %s, %s" % (sT[2], sT[2], sT[3]))
    p(I("buffer_load_ushort %s, %s, %s, %s offen" % (vB1v[0], vTmp[0], sB1.t(), sT[2]), "res"))
    sOst, sFo, sOp = [S.alloc(n) for n in ("sOst", "sFo", "sOp")]
    p("s_lshl_b32 %s, %s, 6" % (sT[2], sTG12[0]), "s_lshl_b32 %s, %s, 2" % (sT[3], sJ12[0]), "s_add_u32 %s, %s, %s" % (sT[3], sT[3], sW[0]),
      "s_add_u32 %s, %s, %s" % (sT[2], sT[2], sT[3]), "s_lshl_b32 %s, %s, 10" % (sT[2], sT[2]), "s_add_u32 %s, %s, %d" % (sOst[0], sT[2], OBUF),
      "s_lshl_b32 %s, %s, 5" % (sT[2], sTG12[0]), "s_add_u32 %s, %s, %s" % (sT[2], sT[2], sT[3]), "s_lshl_b32 %s, %s, 2" % (sT[2], sT[2]),
      "s_add_u32 %s, %s, %d" % (sFo[0], sT[2], F_O),
      "s_lshl_b32 %s, %s, 7" % (sT[2], sTG35[0]), "s_lshl_b32 %s, %s, 5" % (sT[3], sW[0]), "s_add_u32 %s, %s, %s" % (sT[2], sT[2], sT[3]),
      "s_add_u32 %s, %s, %d" % (sOp[0], sT[2], F_O),
      "v_min_u32 %s, 7, v0" % vPollOff[0], "v_lshlrev_b32 %s, 2, %s" % (vPollOff[0], vPollOff[0]))
    p(Wait("wotr"), "s_barrier")
    p(stamp("pb3"))

    def w2_round(k0, n, sm, moff, tag):
        return rows_dma(sW2, sm, moff, sW2o[0], k0 * 16384, 2 * n, tag)

    def w2_tr(dst, n, vb, off0, tag):
        out = []
        for s in range(n):
            for ct in range(2):
                fr = dst.sub(8 * s + 4 * ct, 4)
                out += [I("ds_read_b64_tr_b16 %s, %s offset:%d" % (fr.t(0, 2), vb[ct], off0 + s * 2048), tag),
                        I("ds_read_b64_tr_b16 %s, %s offset:%d" % (fr.t(2, 2), vb[ct], off0 + s * 2048 + 1024), tag)]
        return out

    def w1_group(g):
        out = [I("s_add_u32 m0, %s, %d" % (sW1m[0], g * 4096)), I("s_add_u32 %s, %s, %d" % (sT[6], sW1o[0], g * 16 * 3584))]
        out += [I("buffer_load_dwordx4 %s, %s, %s offen offset:%d lds" % (vW1[i], sW1.t(), sT[6], 1024 * i), "w1") for i in range(4)]
        return out

    vSb = V.alloc("vSb", 48, 4)
    vT_ = V.alloc("vT", 32, 4)
    vP = V.alloc("vP", 8, 4)
    vO = V.alloc("vO", 32, 4)
    vM = V.alloc("vM", 6)
    vOp = V.alloc("vOp", 8, 4)

    def attention(nfull):
        tilesA = [8 - k for k in range(min(9, nfull))]
        tilesB = [9 - k for k in range(min(9, nfull + 1))]
        tl = {0: tilesA, 1: tilesB}

        def maskof(X, i):
            if i == 8 + X:
                return vMD
            if i == X:
                return vMW
            return None
        jobs1 = [w2_round(0, 3, sW2m[0], 0, "w2e0")]
        jobs = []
        jobs.append(w1_group(0))
        jobs.append([Wait("w2e0", lgkm=False)] + w2_tr(aW2e.sub(0, 24), 3, vTE, 0, "w2t") + [Wait("w2t", vm=False)] + w2_round(3, 3, sW2m[0], 0, "w2e1"))
        jobs.append(w1_group(1))
        jobs.append(w1_group(2))
        jobs.append(w1_group(3))
        jobs.append([Wait("w2e1", lgkm=False)] + w2_tr(aW2e.sub(24, 24), 3, vTE, 0, "w2t") + [Wait("w2t", vm=False)] + w2_round(6, 3, sW2m[0], 0, "w2e2"))
        jobs.append(w1_group(4))
        jobs.append(w1_group(5))
        seq = []
        for k in range(len(tilesB)):
            seq.append((1, tilesB[k]))
            if k < len(tilesA):
                seq.append((0, tilesA[k]))
        seq.sort(key=lambda e: (e[0], -e[1]))
        first = {0: True, 1: True}

        def s_mfma(n):
            X, i = seq[n]
            m = maskof(X, i)
            return I("v_mfma_f32_32x32x16_bf16 %s, %s, %s, %s" % (vSb.t(16 * (n % 3), 16), aK.t(4 * i, 4), vQf.t(4 * X, 4), m.t() if m else "0"))

        def maxes(n):
            X, i = seq[n]
            b = vSb.sub(16 * (n % 3), 16)
            t0, t1 = vM[2 * X], vM[2 * X + 1]
            out = []
            if first[X]:
                out += [I("v_max3_f32 %s, %s, %s, %s" % (t0, b[0], b[1], b[2])), I("v_max3_f32 %s, %s, %s, %s" % (t1, b[3], b[4], b[5])),
                        I("v_max3_f32 %s, %s, %s, %s" % (t0, b[6], b[7], t0)), I("v_max3_f32 %s, %s, %s, %s" % (t1, b[8], b[9], t1)),
                        I("v_max3_f32 %s, %s, %s, %s" % (t0, b[10], b[11], t0)), I("v_max3_f32 %s, %s, %s, %s" % (t1, b[12], b[13], t1)),
                        I("v_max3_f32 %s, %s, %s, %s" % (t0, b[14], b[15], t0))]
                first[X] = False
            else:
                for k in range(8):
                    t = t0 if k % 2 == 0 else t1
                    out.append(I("v_max3_f32 %s, %s, %s, %s" % (t, b[2 * k], b[2 * k + 1], t)))
            return out

        def finish_max(X):
            t0, t1 = vM[2 * X], vM[2 * X + 1]
            return [I("v_max_f32 %s, %s, %s" % (t0, t0, t1)), I("v_mov_b32 %s, %s" % (t1, t0)),
                    I("v_permlane32_swap_b32 %s, %s" % (t0, t1)), I("v_max_f32 %s, %s, %s" % (t0, t0, t1)),
                    I("v_cvt_pk_bf16_f32 %s, -%s, 0" % (vB1[4 * X], t0)),
                    I("v_mfma_f32_32x32x16_bf16 %s, %s, %s, 0" % (vT_.t(16 * X, 16), vA1.t(), vB1.t(4 * X, 4)))]
        p(jobs1[0])
        N = len(seq)
        p(s_mfma(0))
        if N > 1:
            p(s_mfma(1))
        nA = len(tilesA)
        for n in range(N):
            if n + 2 < N:
                p(s_mfma(n + 2))
            p(maxes(n))
            if n == nA - 1:
                p(finish_max(0))
        p(finish_max(1))
        p(stamp("a1"))
        seq2 = [(0, i) for i in tilesA] + [(1, i) for i in tilesB]

        def s2(n):
            X, i = seq2[n]
            d = vSb.t(16 * (n % 2), 16)
            m = maskof(X, i)
            if m:
                return [I("v_mfma_f32_32x32x16_bf16 %s, %s, %s, %s" % (d, vA1.t(), vB1.t(4 * X, 4), m.t())),
                        I("v_mfma_f32_32x32x16_bf16 %s, %s, %s, %s" % (d, aK.t(4 * i, 4), vQf.t(4 * X, 4), d))]
            return [I("v_mfma_f32_32x32x16_bf16 %s, %s, %s, %s" % (d, aK.t(4 * i, 4), vQf.t(4 * X, 4), vT_.t(16 * X, 16)))]

        def pv(n, ks):
            X, i = seq2[n]
            firstt = (i == 8 + X and ks == 0)
            o = vO.t(16 * X, 16)
            return I("v_mfma_f32_32x32x16_bf16 %s, %s, %s, %s" % (o, aV.t(8 * i + 4 * ks, 4), vP.t(4 * ks, 4), "0" if firstt else o))

        def finish_o(X):
            o = vO.sub(16 * X, 16)
            out = [I("v_rcp_f32 %s, %s" % (vM[4], o[8])), I("s_nop 0")]
            out += [I("v_mul_f32 %s, %s, %s" % (o[k], vM[4], o[k])) for k in range(8)]
            out += [I("v_cvt_pk_bf16_f32 %s, %s, %s" % (vOp[4 * X + k], o[2 * k], o[2 * k + 1])) for k in range(4)]
            if X == 0:
                out += [I("buffer_store_dwordx4 %s, %s, %s, %s offen sc1" % (vOp.t(0, 4), vL16[0], sWS.t(), sOst[0]), "oA")]
            else:
                out += [I("s_add_u32 %s, %s, 32768" % (sT[7], sOst[0])),
                        I("buffer_store_dwordx4 %s, %s, %s, %s offen sc1" % (vOp.t(4, 4), vL16[0], sWS.t(), sT[7]), "oB")]
            return out
        p(s2(0))
        N = len(seq2)
        nB = len(tilesB)
        pending_pv = None
        jq = list(jobs)
        lateA = None
        for n in range(N):
            X, i = seq2[n]
            b = vSb.sub(16 * (n % 2), 16)
            e = [I("v_exp_f32 %s, %s" % (b[k], b[k])) for k in range(16)]
            c = [I("v_cvt_pk_bf16_f32 %s, %s, %s" % (vP[k], b[2 * k], b[2 * k + 1])) for k in range(8)]
            nx = s2(n + 1) if n + 1 < N else []
            p(e[0], e[1])
            if pending_pv:
                p(pending_pv)
                pending_pv = None
            p(nx)
            p(e[2], e[3], e[4], c[0], e[5], c[1], e[6], e[7], e[8], c[2], e[9], c[3], e[10], e[11])
            p(pv(n, 0))
            p(e[12], c[4], e[13], c[5], e[14], e[15])
            if lateA:
                p(lateA)
                lateA = None
            p(c[6])
            if jq and n >= 1:
                p(jq.pop(0))
            p(c[7])
            pending_pv = pv(n, 1)
            kB = n - nA
            if n == nA - 1:
                lateA = finish_o(0)
            if X == 1 and kB == min(opt.oa_flag_tile, nB - 1):
                if nfull < 9:
                    while jq:
                        p(jq.pop(0))
                    p(Wait("w1", "w2e2", lgkm=False))
                p(Wait("oA"), flag_store(sFo[0]))
            if X == 1 and kB == min(opt.oa_poll_tile, nB - 1):
                p(poll_issue(vPollOff[0], sOp[0]))
        p("s_nop 1", pending_pv)
        for j in jq:
            p(j)
        p(w1_group(6), w1_group(7))
        p(Wait("w2e2", lgkm=False), w2_tr(aW2e.sub(48, 24), 3, vTE, 0, "w2t"))
        p(finish_o(1))

    variants = [("t4", 9), ("t0", 1), ("t1", 3), ("t2", 5), ("t3", 7)]
    p("s_cmp_lt_u32 %s, 4" % sTG12[0], "s_cbranch_scc1 L_att_small")
    s0 = p.snapshot()
    ns0 = nstamp[0]
    attention(9)
    mainstate = p.snapshot()
    p("L_att_done:")
    main_out = p.out
    states = [mainstate]
    alt = []
    names_keep = list(STAMP_NAMES)
    for t in range(4):
        p.out = []
        p.restore(s0)
        nstamp[0] = ns0
        p("L_att_t%d:" % t)
        if t == 0:
            pass
        attention(2 * t + 1)
        states.append(p.snapshot())
        p("s_branch L_att_done")
        alt += p.out
    STAMP_NAMES[:] = names_keep
    nstamp[0] = len(names_keep)
    disp = Prog()
    disp("L_att_small:")
    for t in range(3):
        disp("s_cmp_eq_u32 %s, %d" % (sTG12[0], t), "s_cbranch_scc1 L_att_t%d" % t)
    disp("s_branch L_att_t3")
    tail.append(disp.out)
    tail.append(alt)
    p.out = main_out
    p.restore(Prog.merge(states))
    p(stamp("att"))
    V.free("vSb", "vT", "vP", "vO", "vM", "vOp", "vMD", "vMW", "vA1", "vB1", "vQf", "vW1", "vTE")
    A.free("aK", "aV")
    S.free("sW1o", "sW1m", "sKVp", "sFl")

    vW1f = V.alloc("vW1f", 128, at=128)
    vG = V.alloc("vG", 32, at=64)
    acc = V.alloc("acc", 32, at=96)
    vRW = V.alloc("vRW", 1)
    vHst = V.alloc("vHst")
    vSst = V.alloc("vSst")
    sOld, sHst, sSst, sFh = [S.alloc(n) for n in ("sOld", "sHst", "sSst", "sFh")]
    pre = ["s_lshl_b32 %s, %s, 16" % (sT[2], sTG35[0]), "s_lshl_b32 %s, %s, 13" % (sT[3], sW[0]), "s_add_u32 %s, %s, %s" % (sT[3], sT[2], sT[3]),
           "s_add_u32 %s, %s, %d" % (sOld[0], sT[3], OBUF),
           "s_lshl_b32 %s, %s, 12" % (sT[3], sJ35[0]), "s_add_u32 %s, %s, %s" % (sT[3], sT[2], sT[3]), "s_lshl_b32 %s, %s, 7" % (sT[4], sW[0]),
           "s_add_u32 %s, %s, %s" % (sT[3], sT[3], sT[4]), "s_add_u32 %s, %s, %d" % (sHst[0], sT[3], HBUF),
           "v_and_b32 %s, 7, v0" % vTmp[0], "v_lshlrev_b32 %s, 9, %s" % (vTmp[0], vTmp[0]),
           "v_lshrrev_b32 %s, 3, v0" % vTmp[1], "v_lshl_add_u32 %s, %s, 4, %s" % (vHst[0], vTmp[1], vTmp[0]),
           "v_lshlrev_b32 %s, 4, %s" % (vSst[0], vTmp[1]),
           "s_lshl_b32 %s, %s, 13" % (sT[3], sTG35[0]), "s_lshl_b32 %s, %s, 9" % (sT[4], sJ35[0]), "s_add_u32 %s, %s, %s" % (sT[3], sT[3], sT[4]),
           "s_lshl_b32 %s, %s, 7" % (sT[4], sW[0]), "s_add_u32 %s, %s, %s" % (sT[3], sT[3], sT[4]), "s_add_u32 %s, %s, %d" % (sSst[0], sT[3], HSTAT),
           "s_lshl_b32 %s, %s, 5" % (sT[3], sTG35[0]), "s_lshl_b32 %s, %s, 2" % (sT[4], sJ35[0]), "s_add_u32 %s, %s, %s" % (sT[3], sT[3], sT[4]),
           "s_add_u32 %s, %s, %s" % (sT[3], sT[3], sW[0]), "s_lshl_b32 %s, %s, 2" % (sT[3], sT[3]), "s_add_u32 %s, %s, %d" % (sFh[0], sT[3], F_H),
           "v_and_b32 %s, 31, v0" % vTmp[0], "v_lshrrev_b32 %s, 5, v0" % vTmp[1], "v_and_b32 %s, 7, v0" % vTmp[2],
           "v_xor_b32 %s, %s, %s" % (vTmp[1], vTmp[1], vTmp[2]), "v_lshlrev_b32 %s, 4, %s" % (vTmp[1], vTmp[1]),
           "v_lshl_add_u32 %s, %s, 8, %s" % (vTmp[0], vTmp[0], vTmp[1]), "s_lshl_b32 %s, %s, 13" % (sT[3], sW[0]),
           "v_add_u32 %s, %s, %s" % (vRW[0], sT[3], vTmp[0]),
           "v_lshrrev_b32 %s, 3, v0" % vTmp[0], "v_lshlrev_b32 %s, 1, %s" % (vTmp[2], vTmp[2]), "v_xor_b32 %s, %s, %s" % (vTmp[2], vTmp[2], vTmp[0]),
           "v_lshlrev_b32 %s, 4, %s" % (vTmp[2], vTmp[2]), "v_lshl_add_u32 %s, %s, 8, %s" % (vTmp[0], vTmp[0], vTmp[2]),
           "s_lshl_b32 %s, %s, 11" % (sT[3], sW[0]), "v_add_u32 %s, %s, %s" % (vRR_[0], sT[3], vTmp[0]), "v_xor_b32 %s, 16, %s" % (vRR_[1], vRR_[0])]

    def o_loads(half):
        out = []
        for g0 in range(2):
            out.append(I("s_add_u32 %s, %s, %d" % (sT[6], sOld[0], half * 32768 + g0 * 4096)))
            out += [I("buffer_load_dwordx4 %s, %s, %s, %s offen offset:%d sc1" % (vG.t(16 * g0 + 4 * i, 4), vL16[0], sWS.t(), sT[6], 1024 * i), "o") for i in range(4)]
        return out

    def red_writes(ct, region):
        return [I("ds_write_b128 %s, %s offset:%d" % (vRWx[rq], acc.t(16 * ct + 4 * rq, 4), region + ct * 128), "red") for rq in range(4)]

    def red_reads(region):
        return [I("ds_read_b128 %s, %s offset:%d" % (vG.t(8 * w_ + 4 * e, 4), vRR_[e], region + w_ * 8192)) for w_ in range(4) for e in range(2)]

    def red_sum():
        out = []
        for k in range(8):
            out.append(I("v_add_f32 %s, %s, %s" % (vG[k], vG[k], vG[8 + k])))
        for k in range(8):
            out.append(I("v_add_f32 %s, %s, %s" % (vG[16 + k], vG[16 + k], vG[24 + k])))
        for k in range(8):
            out.append(I("v_add_f32 %s, %s, %s" % (vG[k], vG[k], vG[16 + k])))
        return out

    def add_packed(src):
        out = []
        for k in range(4):
            out += [I("v_lshlrev_b32 %s, 16, %s" % (vG[8 + 2 * k], src[k])), I("v_and_b32 %s, 0xffff0000, %s" % (vG[9 + 2 * k], src[k]))]
        for k in range(8):
            out.append(I("v_add_f32 %s, %s, %s" % (vG[k], vG[k], vG[8 + k])))
        return out

    def s3_half(half, shadow1, shadow2):
        region = RG[half]
        res = vRes.sub(4 * half, 4)
        for ct in range(2):
            for s in range(8):
                a_ = acc.t(16 * ct, 16)
                p("v_mfma_f32_32x32x16_bf16 %s, %s, %s, %s" % (a_, aWo.t(8 * s + 4 * ct, 4), vG.t(4 * s, 4), "0" if s == 0 else a_))
                if ct == 1 and s >= 4:
                    p(red_writes(0, region)[s - 4])
        p(shadow1)
        p(red_writes(1, region))
        p(Wait("red"), "s_barrier")
        p(red_reads(region))
        p(shadow2)
        p(red_sum(), add_packed(res))
        for k in range(4):
            p("v_cvt_pk_bf16_f32 %s, %s, %s" % (res[k], vG[2 * k], vG[2 * k + 1]))
        p("s_add_u32 %s, %s, %d" % (sT[6], sHst[0], half * 32768))
        p(I("buffer_store_dwordx4 %s, %s, %s, %s offen sc1" % (res.t(), vHst[0], sWS.t(), sT[6]), "h%d" % half))
        su, sq = vG[8], vG[9]
        for k in range(4):
            p("v_dot2_f32_bf16 %s, %s, %s, %s" % (su, res[k], vOneP[0], "0" if k == 0 else su),
              "v_dot2_f32_bf16 %s, %s, %s, %s" % (sq, res[k], res[k], "0" if k == 0 else sq))
        for dp in ("quad_perm:[1,0,3,2]", "quad_perm:[2,3,0,1]", "row_half_mirror"):
            p("v_add_f32_dpp %s, %s, %s %s row_mask:0xf bank_mask:0xf" % (vG[10], su, su, dp),
              "v_add_f32_dpp %s, %s, %s %s row_mask:0xf bank_mask:0xf" % (vG[11], sq, sq, dp),
              "v_mov_b32 %s, %s" % (su, vG[10]), "v_mov_b32 %s, %s" % (sq, vG[11]))
        p("s_add_u32 %s, %s, %d" % (sT[6], sSst[0], half * 4096),
          "s_mov_b32 exec_lo, 0x01010101", "s_mov_b32 exec_hi, 0x01010101")
        p(I("buffer_store_dwordx4 %s, %s, %s, %s offen sc1" % (vG.t(8, 4), vSst[0], sWS.t(), sT[6]), "h%d" % half))
        p("s_mov_b64 exec, -1")

    p(pre)
    for rq in range(4):
        p("v_xor_b32 %s, %d, %s" % (vRWx[rq], (2 * rq) << 4, vRW[0]))
    V.free("vRW")
    p(poll_check(vPollOff[0], sOp[0]))
    p(stamp("oAflag"))
    p(o_loads(0))
    vT1 = V.alloc("vT1", 2)
    p("v_lshrrev_b32 %s, 5, v0" % vTmp[0], "v_lshl_add_u32 %s, %s, 3, %s" % (vTmp[0], vTmp[0], vRR[0]),
      "v_lshl_add_u32 %s, %s, 8, %s" % (vTmp[0], vTmp[0], vTRb[0]),
      "v_xor_b32 %s, %s, %s" % (vTmp[1], sW[0], vRR[0]), "v_lshl_add_u32 %s, %s, 6, %s" % (vTmp[0], vTmp[1], vTmp[0]),
      "v_add_u32 %s, %d, %s" % (vT1[0], RG[1], vTmp[0]), "v_add_u32 %s, %d, %s" % (vT1[1], RG[1] + 65536, vTmp[0]))
    p(Wait("w1", "w2t"), "s_barrier")
    for s in range(32):
        p(I("ds_read_b64_tr_b16 %s, %s offset:%d" % (vW1f.t(4 * s, 2), vT1[s >> 4], (s & 15) * 4096), "w1t"),
          I("ds_read_b64_tr_b16 %s, %s offset:%d" % (vW1f.t(4 * s + 2, 2), vT1[s >> 4], (s & 15) * 4096 + 1024), "w1t"))
        if s == 16:
            p(Wait("oB", lgkm=False), "s_add_u32 %s, %s, 4096" % (sT[7], sFo[0]), flag_store(sT[7]))
    V.free("vT1", "vTRb", "vRR", "vChk")
    p(stamp("w1tr"))
    p("s_add_u32 %s, %s, 4096" % (sOp[0], sOp[0]))
    s3_half(0, [], poll_issue(vPollOff[0], sOp[0]))
    p(stamp("s3a"))
    cs = []
    c0, c1 = vAx[0], vAx[1]
    for s in range(32):
        for k in range(4):
            d = c0 if k % 2 == 0 else c1
            cs.append(I("v_dot2_f32_bf16 %s, %s, %s, %s" % (d, vW1f[4 * s + k], vOneP[0], "0" if (s == 0 and k < 2) else d)))
    cs += [I("v_add_f32 %s, %s, %s" % (c0, c0, c1)), I("v_mov_b32 %s, %s" % (c1, c0)), I("v_permlane32_swap_b32 %s, %s" % (c0, c1)),
           I("v_add_f32 %s, %s, %s" % (c0, c0, c1)), I("v_sub_f32 %s, 0, %s" % (c0, c0)),
           I("v_cvt_pk_bf16_f32 %s, %s, %s" % (vAx[2], c0, c0)), I("v_and_b32 %s, 0xffff0000, %s" % (c1, vAx[2])),
           I("v_sub_f32 %s, %s, %s" % (c0, c0, c1)), I("v_cvt_pk_bf16_f32 %s, %s, %s" % (c0, c0, c0)),
           I("v_and_b32 %s, 0xffff, %s" % (c0, c0)),
           I("v_lshl_or_b32 %s, %s, 16, %s" % (vAx[1], vB1v[0], c0)),
           I("v_mov_b32 %s, %s" % (vAx[0], vAx[2])),
           I("v_mov_b32 %s, %s" % (vAx[2], vB1v[0])),
           I("v_mov_b32 %s, 0" % vAx[3]),
           I("v_cmp_gt_u32 vcc, 32, v0")]
    cs += [I("v_cndmask_b32 %s, %s, %s, vcc" % (vAx[k], vZero[0], vAx[k])) for k in range(3)]
    p(poll_check(vPollOff[0], sOp[0]))
    p(stamp("oBflag"))
    p(o_loads(1))
    p(cs[:64])
    p(Wait("h0", lgkm=False), flag_store(sFh[0]))
    p(cs[64:])
    V.free("vB1v")
    sHp, sHld, sHm, sSld, sGst, sFg = [S.alloc(n) for n in ("sHp", "sHld", "sHm", "sSld", "sGst", "sFg")]
    vSld = V.alloc("vSld")
    vHp = V.alloc("vHp")
    p("s_lshl_b32 %s, %s, 8" % (sT[2], sP4[0]), "s_add_u32 %s, %s, %d" % (sHp[0], sT[2], F_H), "v_lshlrev_b32 %s, 2, v0" % vHp[0],
      "s_lshl_b32 %s, %s, 17" % (sT[2], sP4[0]), "s_lshl_b32 %s, %s, 13" % (sT[3], sW[0]), "s_add_u32 %s, %s, %s" % (sT[2], sT[2], sT[3]),
      "s_add_u32 %s, %s, %d" % (sHld[0], sT[2], HBUF), "s_mov_b32 %s, %s" % (sHm[0], sT[3]),
      "s_lshl_b32 %s, %s, 14" % (sT[2], sP4[0]), "s_lshr_b32 %s, %s, 1" % (sT[3], sW[0]), "s_lshl_b32 %s, %s, 13" % (sT[3], sT[3]),
      "s_add_u32 %s, %s, %s" % (sT[2], sT[2], sT[3]), "s_and_b32 %s, %s, 1" % (sT[3], sW[0]), "s_lshl_b32 %s, %s, 8" % (sT[3], sT[3]),
      "s_add_u32 %s, %s, %s" % (sT[2], sT[2], sT[3]), "s_add_u32 %s, %s, %d" % (sSld[0], sT[2], HSTAT),
      "v_and_b32 %s, 15, v0" % vTmp[0], "v_lshlrev_b32 %s, 4, %s" % (vTmp[0], vTmp[0]),
      "v_lshrrev_b32 %s, 4, v0" % vTmp[1], "v_lshl_add_u32 %s, %s, 10, %s" % (vSld[0], vTmp[1], vTmp[0]),
      "s_mul_i32 %s, %s, %d" % (sT[2], sP4[0], 4 * 112 * 1024), "s_lshl_b32 %s, %s, 13" % (sT[3], sM4[0]), "s_add_u32 %s, %s, %s" % (sT[2], sT[2], sT[3]),
      "s_lshl_b32 %s, %s, 11" % (sT[3], sW[0]), "s_add_u32 %s, %s, %s" % (sT[2], sT[2], sT[3]), "s_add_u32 %s, %s, %d" % (sGst[0], sT[2], GBUF),
      "s_lshl_b32 %s, %s, 9" % (sT[2], sP4[0]), "s_lshl_b32 %s, %s, 4" % (sT[3], sM4[0]), "s_add_u32 %s, %s, %s" % (sT[2], sT[2], sT[3]),
      "s_lshl_b32 %s, %s, 2" % (sT[3], sW[0]), "s_add_u32 %s, %s, %s" % (sT[2], sT[2], sT[3]), "s_add_u32 %s, %s, %d" % (sFg[0], sT[2], F_G))
    p(stamp("cs"))
    s3_half(1, [], [])
    p(stamp("s3b"))
    A.free("aWo")
    S.free("sOld", "sHst", "sSst", "sOp", "sFo", "sOst")
    V.free("vHst", "vSst", "vOneP")

    sW2l = S.alloc("sW2l")
    p("s_lshl_b32 %s, %s, 13" % (sW2l[0], sW[0]))
    late = [(9, 3, sW2m[0], RG[0]), (12, 4, sW2l[0], RG[2]), (16, 4, sW2l[0], RG[3]), (20, 4, sW2l[0], RG[4]), (24, 4, sW2l[0], RG[1])]

    def late_dma(k):
        k0, n, sm, reg = late[k]
        return w2_round(k0, n, sm, reg, "w2l")

    p("s_cmp_eq_u32 %s, 0" % sACT[0], "s_cbranch_scc1 L_idle4")
    s_before4 = p.snapshot()
    V.free("vG")
    fh = V.alloc("fh", 12, at=64)
    vGe = V.alloc("vGe", 8, at=76)
    vGp = V.alloc("vGp", 8, at=84)
    vCs = V.alloc("vCs", 16, at=48)
    vSx = fh.sub(0, 8)
    vCrd = V.alloc("vCrd")
    vCwr = V.alloc("vCwr")
    p("v_and_b32 %s, 31, v0" % vTmp[0], "v_lshlrev_b32 %s, 5, %s" % (vCrd[0], vTmp[0]),
      "v_and_b32 %s, 15, v0" % vTmp[0], "v_lshlrev_b32 %s, 5, %s" % (vTmp[0], vTmp[0]),
      "s_lshl_b32 %s, %s, 9" % (sT[2], sW[0]), "v_add_u32 %s, %s, %s" % (vCwr[0], sT[2], vTmp[0]))
    blocks = [(0, 0, RG[2]), (1, 0, RG[3]), (0, 1, RG[4]), (1, 1, RG[1])]

    def h_dma(k):
        g, half, reg = blocks[k]
        out = []
        for g0 in range(2):
            out += [I("s_add_u32 m0, %s, %d" % (sHm[0], reg + g0 * 4096)),
                    I("s_add_u32 %s, %s, %d" % (sT[6], sHld[0], (2 * g + half) * 32768 + g0 * 4096))]
            out += [I("buffer_load_dwordx4 %s, %s, %s offen offset:%d sc1 lds" % (vL16[0], sWS.t(), sT[6], 1024 * i), "hb%d" % k) for i in range(4)]
        return out

    def stat_loads(half):
        return [I("s_add_u32 %s, %s, %d" % (sT[6], sSld[0], half * 4096)),
                I("buffer_load_dwordx2 %s, %s, %s, %s offen sc1" % (vSx.t(0, 2), vSld[0], sWS.t(), sT[6]), "st"),
                I("buffer_load_dwordx2 %s, %s, %s, %s offen offset:512 sc1" % (vSx.t(2, 2), vSld[0], sWS.t(), sT[6]), "st")]

    def stat_math(half):
        x = vSx
        o = [I("v_add_f32 %s, %s, %s" % (x[0], x[0], x[2])), I("v_add_f32 %s, %s, %s" % (x[1], x[1], x[3])),
             I("v_permlane16_swap_b32 %s, %s" % (x[0], x[1])), I("v_add_f32 %s, %s, %s" % (x[0], x[0], x[1])),
             I("v_mov_b32 %s, %s" % (x[1], x[0])), I("v_permlane32_swap_b32 %s, %s" % (x[0], x[1])),
             I("v_add_f32 %s, %s, %s" % (x[0], x[0], x[1])),
             I("v_mov_b32 %s, %s" % (x[1], x[0])), I("v_permlane16_swap_b32 %s, %s" % (x[0], x[1])),
             I("v_mul_f32 %s, %s, %s" % (x[0], fbits(1.0 / 512), x[0])), I("v_mul_f32 %s, %s, %s" % (x[1], fbits(1.0 / 512), x[1])),
             I("v_fma_f32 %s, -%s, %s, %s" % (x[1], x[0], x[0], x[1])), I("v_max_f32 %s, 0, %s" % (x[1], x[1])),
             I("v_add_f32 %s, 0x%x, %s" % (x[2], EPS_BITS, x[1])),
             I("v_rcp_f32 %s, %s" % (x[3], x[2])), I("s_nop 0"),
             I("v_mul_f32 %s, %s, %s" % (x[3], x[1], x[3])), I("v_add_f32 %s, 0x%x, %s" % (x[3], EPS_BITS, x[3])),
             I("v_mul_f32 %s, %s, %s" % (x[3], x[3], x[2])),
             I("v_sqrt_f32 %s, %s" % (x[6], x[3])),
             I("v_cvt_pk_bf16_f32 %s, %s, %s" % (x[2], x[0], x[0])),
             I("v_rcp_f32 %s, %s" % (x[3], x[6])),
             I("v_and_b32 %s, 0xffff0000, %s" % (x[1], x[2])), I("v_sub_f32 %s, %s, %s" % (x[1], x[0], x[1])),
             I("v_mul_f32 %s, %s, %s" % (x[4], fbits(GC0), x[3])),
             I("v_mul_f32 %s, %s, %s" % (x[7], x[3], x[3])), I("v_mul_f32 %s, %s, %s" % (x[7], x[7], x[3])),
             I("v_mul_f32 %s, %s, %s" % (x[5], fbits(GC1), x[7])),
             I("v_cvt_pk_bf16_f32 %s, %s, %s" % (x[7], x[0], x[1])),
             I("v_cvt_pk_bf16_f32 %s, %s, %s" % (x[1], x[0], x[6])),
             I("v_and_b32 %s, 0xffff0000, %s" % (x[2], x[1])), I("v_sub_f32 %s, %s, %s" % (x[2], x[6], x[2])),
             I("v_cvt_pk_bf16_f32 %s, %s, 0" % (x[2], x[2])),
             I("v_mov_b32 %s, %s" % (x[0], x[7])), I("v_mov_b32 %s, 0" % x[3]),
             I("s_mov_b64 exec, 0xffff"),
             I("ds_write_b128 %s, %s offset:%d" % (vCwr[0], x.t(0, 4), STAT_A + half * 2048), "stw"),
             I("ds_write_b128 %s, %s offset:%d" % (vCwr[0], x.t(4, 4), STAT_A + half * 2048 + 16), "stw"),
             I("s_mov_b64 exec, -1")]
        return o

    def const_reads(k):
        g, half, reg = blocks[k]
        c = vCs.sub(8 * (k & 1), 8)
        return [I("ds_read_b128 %s, %s offset:%d" % (c.t(0, 4), vCrd[0], STAT_A + half * 2048 + g * 1024)),
                I("ds_read_b128 %s, %s offset:%d" % (c.t(4, 4), vCrd[0], STAT_A + half * 2048 + g * 1024 + 16))]

    def ext_mfma(k):
        a_ = acc.t(16 * (k & 1), 16)
        return I("v_mfma_f32_32x32x16_bf16 %s, %s, %s, %s" % (a_, vAx.t(), vCs.t(8 * (k & 1), 4), a_))

    def gelu(k):
        g, half, reg = blocks[k]
        u = acc.sub(16 * (k & 1), 16)
        c = vCs.sub(8 * (k & 1), 8)
        al, be, ir = c[4], c[5], c[6]
        out = []
        for q in range(4):
            t = vGe.sub(4 * (q % 2), 4)
            e = range(4)
            out += [I("v_mul_f32 %s, %s, %s" % (t[i], u[4 * q + i], u[4 * q + i])) for i in e]
            out += [I("v_fma_f32 %s, %s, %s, %s" % (t[i], t[i], be, al)) for i in e]
            out += [I("v_mul_f32 %s, %s, %s" % (t[i], t[i], u[4 * q + i])) for i in e]
            out += [I("v_exp_f32 %s, %s" % (t[i], t[i])) for i in e]
            out += [I("v_fma_f32 %s, %s, %s, %s" % (t[i], t[i], ir, ir)) for i in e]
            out += [I("v_rcp_f32 %s, %s" % (t[i], t[i])) for i in e]
            out += [I("v_mul_f32 %s, %s, %s" % (t[i], t[i], u[4 * q + i])) for i in e]
            out += [I("v_cvt_pk_bf16_f32 %s, %s, %s" % (vGp[2 * q + i], t[2 * i], t[2 * i + 1])) for i in range(2)]
            if q % 2 == 1:
                if q == 1:
                    out.append(I("s_add_u32 %s, %s, %d" % (sT[7], sGst[0], (2 * g + half) * 112 * 1024)))
                out.append(I("buffer_store_dwordx4 %s, %s, %s, %s offen offset:%d sc1" % (vGp.t(4 * (q >> 1), 4), vL16[0], sWS.t(), sT[7], 1024 * (q >> 1)), "g%d" % k))
        return out

    def g_flag(k):
        g, half, reg = blocks[k]
        return [Wait("g%d" % k, lgkm=False), I("s_add_u32 %s, %s, %d" % (sT[8], sFg[0], half * 8192 + g * 256))] + flag_store(sT[8])

    vHrd = V.alloc("vHrd", 3)
    p("v_mov_b32 %s, %s" % (vHrd[0], vL16[0]), "v_add_u32 %s, 65536, %s" % (vHrd[1], vL16[0]))
    blocks_base = {RG[1]: (0, RG[1]), RG[2]: (1, 0), RG[3]: (1, 32768), RG[4]: (2, 0)}
    p("v_add_u32 %s, 131072, %s" % (vHrd[2], vL16[0]))

    def chain(k, fill, head=()):
        g, half, reg = blocks[k]
        bi, bo = blocks_base[reg]
        a_ = acc.t(16 * (k & 1), 16)
        rd = lambda s: I("ds_read_b128 %s, %s offset:%d" % (fh.t(4 * (s % 3), 4), vHrd[bi], bo + s * 1024))
        p(rd(0), rd(1))
        groups = []
        for s in range(32):
            gl = [I("v_mfma_f32_32x32x16_bf16 %s, %s, %s, %s" % (a_, vW1f.t(4 * s, 4), fh.t(4 * (s % 3), 4), "0" if s == 0 else a_))]
            if s + 2 < 32:
                gl.append(rd(s + 2))
            groups.append(gl)
        k0 = 0
        if head:
            p(groups[0], groups[1], head)
            k0 = 2
        p(weave(groups[k0:], fill))

    p(poll_issue(vHp[0], sHp[0]), late_dma(0))
    p(poll_check(vHp[0], sHp[0]))
    p(stamp("hAflag"))
    p(stat_loads(0), h_dma(0), h_dma(1))
    p(Wait("h1", lgkm=False), "s_add_u32 %s, %s, 4096" % (sT[7], sFh[0]), flag_store(sT[7]))
    p(stat_math(0))
    p(Wait("hb0", "stw"), "s_barrier")
    p(stamp("hA0"))
    p("s_add_u32 %s, %s, 4096" % (sHp[0], sHp[0]))
    chain(0, const_reads(0) + const_reads(1))
    p(ext_mfma(0))
    p(Wait("hb1", lgkm=False), "s_barrier")
    p(stamp("c0"))
    chain(1, gelu(0), head=late_dma(1) + poll_issue(vHp[0], sHp[0]))
    p(ext_mfma(1))
    p(poll_check(vHp[0], sHp[0]))
    p(stamp("c1"))
    p(stat_loads(1), h_dma(2))
    p(g_flag(0))
    gl1 = gelu(1)
    p(gl1[:40])
    p(stat_math(1))
    p(Wait("hb2", "stw"), "s_barrier")
    p(stamp("hB0"))
    chain(2, gl1[40:] + const_reads(2), head=h_dma(3) + late_dma(2))
    p(g_flag(1))
    p(ext_mfma(2))
    p(const_reads(3))
    p(Wait("hb3", lgkm=False), "s_barrier")
    p(stamp("c2"))
    chain(3, gelu(2), head=late_dma(3))
    p(ext_mfma(3))
    p("s_barrier")
    p(late_dma(4))
    p(stamp("c3"))
    gl3 = gelu(3)
    p(gl3[:30])
    p(g_flag(2))
    p(gl3[30:])
    p(stamp("gelu3"))
    V.free("fh", "vGe", "vGp", "vCs", "vCrd", "vCwr", "vHrd", "vW1f", "vAx", "vSld", "vHp")
    st4 = p.snapshot()
    main_out = p.out
    p.out = []
    p.restore(s_before4)
    p("L_idle4:")
    p(Wait("h1", lgkm=False), "s_add_u32 %s, %s, 4096" % (sT[7], sFh[0]), flag_store(sT[7]))
    p("s_barrier")
    for k in range(5):
        p(late_dma(k))
    p.drain()
    p("s_branch L_s5")
    tail.append(p.out)
    p.out = main_out
    p.restore(st4)
    p(g_flag(3))
    p("L_s5:")

    aW2l = A.alloc("aW2l", 152, 4)
    vG = V.alloc("vG2", 112, 4)
    vTL = V.alloc("vTL", 6)
    sGp, sGld = [S.alloc(n) for n in ("sGp", "sGld")]
    p("s_lshl_b32 %s, %s, 8" % (sT[2], sTG35[0]), "s_mul_i32 %s, %s, 56" % (sT[3], sW[0]), "s_add_u32 %s, %s, %s" % (sT[2], sT[2], sT[3]),
      "s_add_u32 %s, %s, %d" % (sGp[0], sT[2], F_G),
      "v_min_u32 %s, 13, v0" % vPollOff[0], "v_lshlrev_b32 %s, 2, %s" % (vPollOff[0], vPollOff[0]),
      "s_mul_i32 %s, %s, %d" % (sT[2], sTG35[0], 2 * 112 * 1024), "s_mul_i32 %s, %s, %d" % (sT[3], sW[0], 28 * 1024),
      "s_add_u32 %s, %s, %s" % (sT[2], sT[2], sT[3]), "s_add_u32 %s, %s, %d" % (sGld[0], sT[2], GBUF))
    p(poll_issue(vPollOff[0], sGp[0]))
    for ct in range(2):
        p("v_add_u32 %s, %s, %s" % (vTL[ct], sW2m[0], vTW[ct]),
          "v_add_u32 %s, %s, %s" % (vTL[2 + ct], sW2l[0], vTW[ct]),
          "v_add_u32 %s, 131072, %s" % (vTL[4 + ct], vTL[2 + ct]))
    p(poll_check(vPollOff[0], sGp[0]))
    p(stamp("gAflag"))

    def g_loads(half):
        out = []
        for g0 in range(7):
            out.append(I("s_add_u32 %s, %s, %d" % (sT[6], sGld[0], half * 112 * 1024 + g0 * 4096)))
            out += [I("buffer_load_dwordx4 %s, %s, %s, %s offen offset:%d sc1" % (vG.t(16 * g0 + 4 * i, 4), vL16[0], sWS.t(), sT[6], 1024 * i), "g") for i in range(4)]
        return out

    def w2frag(s, ct):
        return aW2e.t(8 * s + 4 * ct, 4) if s < 9 else aW2l.t(8 * (s - 9) + 4 * ct, 4)

    trs = []
    for k, (k0, n, sm, reg) in enumerate(late):
        if k == 0:
            vb, off = vTL.sub(0, 2), 0
        elif reg == RG[4]:
            vb, off = vTL.sub(4, 2), 0
        elif reg == RG[1]:
            vb, off = vTL.sub(2, 2), RG[1]
        else:
            vb, off = None, reg
        trs.append((k0, n, vb, off))
    vTL2 = V.alloc("vTL2", 2)
    for ct in range(2):
        p("v_add_u32 %s, 65536, %s" % (vTL2[ct], vTL[2 + ct]))
    tr_all = []
    for (k0, n, vb, off) in trs:
        if vb is None:
            vb, off = vTL2, off - 65536
        tr_all.append(w2_tr(aW2l.sub(8 * (k0 - 9), 8 * n), n, vb, off, "w2t"))

    def s5_half(half, loads_first, shadow):
        region = RG[half]
        res = vRes.sub(4 * half, 4)
        for s in range(28):
            for ct in range(2):
                a_ = acc.t(16 * ct, 16)
                p("v_mfma_f32_32x32x16_bf16 %s, %s, %s, %s" % (a_, w2frag(s, ct), vG.t(4 * s, 4), "0" if s == 0 else a_))
            if half == 0 and s == 27:
                pass
        if half == 0:
            p("s_barrier")
        p(shadow)
        p(red_writes(0, region), red_writes(1, region))
        p(Wait("red"), "s_barrier")
        vH = vR2
        p([I("ds_read_b128 %s, %s offset:%d" % (vH.t(8 * w_ + 4 * e, 4), vRR_[e], region + w_ * 8192)) for w_ in range(4) for e in range(2)])
        for k in range(8):
            p("v_add_f32 %s, %s, %s" % (vH[k], vH[k], vH[8 + k]))
        for k in range(8):
            p("v_add_f32 %s, %s, %s" % (vH[16 + k], vH[16 + k], vH[24 + k]))
        for k in range(8):
            p("v_add_f32 %s, %s, %s" % (vH[k], vH[k], vH[16 + k]))
        for src in (vB2, res):
            for k in range(4):
                p("v_lshlrev_b32 %s, 16, %s" % (vH[8 + 2 * k], src[k]), "v_and_b32 %s, 0xffff0000, %s" % (vH[9 + 2 * k], src[k]))
            for k in range(8):
                p("v_add_f32 %s, %s, %s" % (vH[k], vH[k], vH[8 + k]))
        for k in range(4):
            p("v_cvt_pk_bf16_f32 %s, %s, %s" % (vH[16 + k], vH[2 * k], vH[2 * k + 1]))
        p("s_add_u32 %s, %s, %d" % (sT[6], sOo[0], half * 32768))
        p(I("buffer_store_dwordx4 %s, %s, %s, %s offen" % (vH.t(16, 4), vOut[0], sOUT.t(), sT[6]), "out"))

    vR2 = V.alloc("vR2", 32, 4)
    gl = g_loads(0)
    p(gl[:13])
    p(Wait("w2l", lgkm=False))
    p(tr_all[0], tr_all[1])
    p(gl[13:])
    p(tr_all[2], tr_all[3], tr_all[4])
    p("s_add_u32 %s, %s, 8192" % (sGp[0], sGp[0]))
    p(poll_issue(vPollOff[0], sGp[0]))
    p(stamp("s5ld"))
    s5_half(0, None, poll_check(vPollOff[0], sGp[0]) + g_loads(1))
    p(stamp("s5a"))
    s5_half(1, None, [])
    p(stamp("s5b"))
    p("s_cmp_lg_u32 %s, 0" % sW[0], "s_cbranch_scc1 L_end")
    p("v_readfirstlane_b32 %s, %s" % (sT[2], vAt[0]), "s_cmp_lg_u32 %s, 255" % sT[2], "s_cbranch_scc1 L_end")
    p(flag_store("0"))
    p("L_end:", "s_endpgm")
    for blk in tail:
        p.out += blk
    p.out.append(I("L_codeend:"))
    p.out.append(I("s_endpgm"))
    return p, V, A, S


STAMP_NAMES = []

HEADER = """; Fused pre-LN sliding-window attention + channel MLP for S=2048, D=512, H=32, W=256, F=1792 (bf16).
; Generated by a hand-written Python generator; one persistent launch, one workgroup per CU.
; @launch grid=(256,1,1) block=(256,1,1) lds=%d
.amdgcn_target "amdgcn-amd-amdhsa--gfx950"
.text
.globl %s_kernel
.p2align 8
.type %s_kernel,@function
%s_kernel:
""" % (LDS_BYTES, NAME, NAME, NAME)

FOOTER = """
.section .rodata,"a"
.p2align 6
.amdhsa_kernel %s_kernel
  .amdhsa_next_free_vgpr 512
  .amdhsa_next_free_sgpr 102
  .amdhsa_accum_offset 256
  .amdhsa_group_segment_fixed_size 0
  .amdhsa_kernarg_size 88
  .amdhsa_user_sgpr_count 2
  .amdhsa_user_sgpr_kernarg_segment_ptr 1
  .amdhsa_system_sgpr_workgroup_id_x 1
  .amdhsa_float_denorm_mode_32 3
.end_amdhsa_kernel
""" % NAME


def generate(path, **kw):
    opt = type("Opt", (O,), kw)
    STAMP_NAMES.clear()
    p, V, A, S = build(opt)
    p.check_exec()
    n = p.fix_hazards_fast()
    txt = HEADER + p.text() + FOOTER
    open(path, "w").write(txt)
    return p, dict(nops=n, vgpr=V.hiwater, agpr=A.hiwater, sgpr=S.hiwater, ninst=len(p.out), stamps=list(STAMP_NAMES))


if __name__ == "__main__":
    out = sys.argv[1] if len(sys.argv) > 1 else "k.s"
    kw = {}
    for a in sys.argv[2:]:
        k, v = a.split("=")
        kw[k] = eval(v)
    p, info = generate(out, **kw)
    print(info)
    print(p.stats())
```
